```python
import torch

def _softmax(x, axis=-1):
    return torch.softmax(x, dim=axis)
def _gelu(x):
    return torch.nn.functional.gelu(x, approximate="tanh")
def _silu(x):
    return torch.nn.functional.silu(x)
def _sigmoid(x):
    return torch.sigmoid(x)
def _layernorm(x, axis=-1, eps=1e-5):
    m = x.mean(dim=axis, keepdim=True)
    v = x.var(dim=axis, keepdim=True, unbiased=False)
    return (x - m) / torch.sqrt(v + eps)
def _scatter_add(tgt, idx, src, axis=0):
    return tgt.clone().index_add_(axis, idx, src)
def _segment_sum(src, seg, n):
    out = torch.zeros((n,) + src.shape[1:], dtype=src.dtype)
    return out.index_add_(0, seg, src)
def _pad(x, pw):
    flat = tuple(v for pair in reversed(pw) for v in pair)
    return torch.nn.functional.pad(x, flat)

kernel_name = 'standalone__paged_block_table_kv_radixattention__sampling'

def setup_inputs():

    _w = (lambda a: (lambda t: t.to(torch.bfloat16) if t.is_floating_point() else t)(torch.as_tensor(a)))
    B, H, Hkv, Dh = 8, 16, 8, 256
    Lk = 2048
    bs = 16
    nb = max(2, Lk // bs)
    P = max(1, nb // 2)
    n_phys = P + B * (nb - P)
    shared = torch.arange(P, dtype=torch.int64)
    priv = P + torch.arange(B * (nb - P), dtype=torch.int64).reshape(B, nb - P)
    bt = torch.cat([torch.tile(shared[None, :], (B, 1)), priv], dim=1)
    ctx = nb * bs - (torch.arange(1, B + 1, dtype=torch.int64) * 2654435761) % max(1, (nb * bs - P * bs) // 2)
    return {
        "q": _w((lambda *s: torch.randn(*s, dtype=torch.bfloat16) * 0.8)(B, H, Dh)),
        "k_cache": _w((lambda *s: torch.randn(*s, dtype=torch.bfloat16) * 0.8)(n_phys, bs, Hkv, Dh)),
        "v_cache": _w((lambda *s: torch.randn(*s, dtype=torch.bfloat16) * 0.05)(n_phys, bs, Hkv, Dh)),
        "block_table": _w(bt.to(torch.int64)),
        "ctx_lens": _w(torch.as_tensor(ctx).to(torch.int64)),
    }

def reference(q, k_cache, v_cache, block_table, ctx_lens):
    B, H, Dh = q.shape
    n_phys, bs, Hkv, _ = k_cache.shape
    nb = block_table.shape[1]
    Lk = nb * bs
    rep = H // Hkv
    k = k_cache[block_table].reshape(B, Lk, Hkv, Dh)
    v = v_cache[block_table].reshape(B, Lk, Hkv, Dh)
    k = (lambda x, n, axis: torch.repeat_interleave(x, n, dim=axis))(k, rep, axis=2)
    v = (lambda x, n, axis: torch.repeat_interleave(x, n, dim=axis))(v, rep, axis=2)
    scores = torch.einsum("bhd,bkhd->bhk", q, k) * (Dh ** -0.5)
    pos = torch.arange(Lk)
    valid = pos[None, :] < ctx_lens[:, None]
    scores = torch.where(valid[:, None, :], scores, -1e9)
    p = _softmax(scores, axis=-1)
    return torch.einsum("bhk,bkhd->bhd", p, v)
```

```python
import re

def regs(tok):
    tok = tok.strip()
    tok = tok.lstrip("-")
    m = re.fullmatch(r"([vsa])\[(\d+):(\d+)\]", tok)
    if m: return {(m.group(1), i) for i in range(int(m.group(2)), int(m.group(3)) + 1)}
    m = re.fullmatch(r"([vsa])(\d+)", tok)
    if m: return {(m.group(1), int(m.group(2)))}
    if tok == "vcc": return {("s", 106), ("s", 107)}
    if tok == "exec": return {("s", 126), ("s", 127)}
    return set()

TRANS = ("v_exp_f32", "v_log_f32", "v_rcp_f32", "v_rsq_f32", "v_sqrt_f32")

class I:
    def __init__(self, line):
        self.line = line
        parts = line.split(None, 1)
        self.op = parts[0]
        rest = parts[1] if len(parts) > 1 else ""
        ops = [x.strip() for x in re.split(r",(?![^\[]*\])", rest)]
        ops = [o.split()[0] if o else o for o in ops]
        self.ops = ops
        op = self.op
        self.mfma = op.startswith("v_mfma")
        self.valu = op.startswith("v_") and not self.mfma
        self.vmem = op.startswith("buffer_") or op.startswith("global_")
        self.ds = op.startswith("ds_")
        self.dpp = "_dpp" in op
        self.perml = op.startswith("v_permlane")
        self.trans = any(op.startswith(t) for t in TRANS)
        self.rdlane = op.startswith("v_readlane") or op.startswith("v_readfirstlane")
        R = [regs(o) for o in ops]
        self.w, self.r = set(), set()
        self.srcc = set(); self.ab = set(); self.dppsrc = set(); self.sdata = set()
        if self.mfma:
            self.w = R[0]; self.ab = R[1] | R[2]; self.srcc = R[3]; self.r = self.ab | self.srcc
        elif self.valu:
            self.w = R[0]
            self.r = set().union(*R[1:]) if len(R) > 1 else set()
            if op.startswith("v_fmac") or self.perml: self.r |= R[0]
            if self.perml: self.w |= R[1]
            if self.dpp: self.dppsrc = R[1]
            if op.startswith("v_add_co") or op.startswith("v_addc_co"): self.w |= R[1]
        elif self.vmem:
            if "load" in op and " lds" not in line:
                self.w = R[0]; self.r = set().union(*R[1:])
            else:
                self.r = set().union(*R)
                if "store_dwordx4" in op or "store_dwordx3" in op: self.sdata = R[0]
                if "atomic" in op and "sc0" in line: self.w = R[0]
        elif self.ds:
            if "read" in op or "rtn" in op or "permute" in op or "swizzle" in op:
                self.w = R[0]; self.r = set().union(*R[1:])
            else:
                self.r = set().union(*R)
        self.states = 1
        if op == "s_nop": self.states = int(ops[0], 0) + 1

def check(text):
    ins = []
    for raw in text.split("\n"):
        line = raw.split(";")[0].strip()
        if not line or line.startswith(".") or line.endswith(":"): continue
        ins.append(I(line))
    bad = []
    isv = lambda S: {x for x in S if x[0] in "va"}
    iss = lambda S: {x for x in S if x[0] == "s"}
    for j, c in enumerate(ins):
        dist = 0
        for k in range(j - 1, max(-1, j - 24), -1):
            p = ins[k]
            if p.op in ("s_endpgm", "s_branch", "s_setpc_b64"): break
            need = 0
            if p.valu:
                if c.mfma and isv(p.w) & c.r: need = max(need, 2)
                if c.dpp and isv(p.w) & c.dppsrc: need = max(need, 2)
                if c.perml and isv(p.w) & c.r: need = max(need, 2)
                if c.rdlane and isv(p.w) & c.r: need = max(need, 1)
                if p.trans and c.valu and not c.trans and isv(p.w) & c.r: need = max(need, 1)
                if c.valu and iss(p.w) & c.r: need = max(need, 4 if c.rdlane else 2)
                if c.vmem and iss(p.w) & c.r: need = max(need, 5)
            if p.mfma:
                passes8 = "32x32" in p.op
                full = 12 if passes8 else 8
                if c.mfma:
                    if p.w & c.ab: need = max(need, full)
                    if p.w & c.srcc and p.w != c.srcc: need = max(need, full - 2)
                    if p.w & c.w and p.w != c.srcc: need = max(need, full)
                elif (c.valu or c.vmem or c.ds) and p.w & (c.r | c.w): need = max(need, full)
                if c.valu and p.srcc & c.w: need = max(need, 7 if passes8 else 3)
            if p.sdata and (c.valu or c.mfma or c.ds or c.vmem) and p.sdata & c.w: need = max(need, 2)
            if dist < need: bad.append((need, dist, p.line, c.line))
            dist += p.states
    return bad
```

```python
import sys
from hazard import check

KNAME = "standalone__paged_block_table_kv_radixattention__sampling_kernel"
KV_BYTES = 576 * 65536
ENT = 2176
INBOX_BYTES = 512 * ENT
ROWS, WAVES = 1040, 16640
ML = 8 * WAVES
OKF = ML + 1024
LDS = OKF + 64
CTX = [2048 - ((b + 1) * 2654435761) % 512 for b in range(8)]
NEG = 0xF1800000
SCALE = 0x3DB8AA3B
DPP = "row_mask:0xf bank_mask:0xf"

def make_plan(opt):
    ks = opt.get("ks", [5, 3, 3, 3, 4, 4, 4, 3, 3])
    bias = opt.get("bias", 0)
    wgs = []
    def split(n, k, first):
        rest = n - first
        sizes = [first] + [rest // (k - 1) + (1 if x < rest % (k - 1) else 0) for x in range(k - 1)]
        return sizes
    n, k = 64, ks[0]
    p = 0
    for s in range(k):
        sz = n // k + (1 if s < n % k else 0)
        wgs.append((2, 0, s, [(x, 16) for x in range(p, p + sz)])); p += sz
    for b in range(8):
        nb = (CTX[b] + 15) // 16 - 64
        k = ks[1 + b]
        first = max(8, min(16, nb // k + bias))
        while max(split(nb, k, first)) > 16: first += 1
        p = 0
        for s, sz in enumerate(split(nb, k, first)):
            tiles = [(64 + 64 * b + x, min(16, CTX[b] - 1024 - 16 * x)) for x in range(p, p + sz)]
            p += sz
            wgs.append((1, b, ks[0] + k - 1, tiles) if s == 0 else (0, b, ks[0] + s - 1, tiles))
    assert len(wgs) == 32
    order = opt.get("order")
    if order: wgs = [wgs[x] for x in order]
    return wgs

def gen(opt=None):
    opt = opt or {}
    NT = opt.get("nt", "nt")
    PROF = opt.get("prof", False)
    L = []
    def e(s):
        for x in s.split("\n"):
            x = x.strip()
            if x: L.append(x if x.endswith(":") or x.startswith(".") or x.startswith(";") else "    " + x)
    plan = make_plan(opt)
    nprod = sum(1 for w in plan if w[0] != 1)
    K0, V0, Q0, D0 = 64, 128, 32, 192
    def vr(a, n=4): return f"v[{a}:{a+n-1}]"
    def Kr(t, hb, i): return K0 + t * 32 + hb * 16 + i * 4
    def Vr(t, tp, hf): return V0 + t * 32 + tp * 8 + hf * 4
    def stamp(n):
        if PROF: e(f"s_memrealtime s[{80+2*n}:{81+2*n}]")

    e(f"; @launch grid=(256,1,1) block=(512,1,1) lds={LDS}")
    e('.amdgcn_target "amdgcn-amd-amdhsa--gfx950"\n.text')
    e(f".globl {KNAME}\n.p2align 8\n.type {KNAME},@function\n{KNAME}:")
    stamp(0)
    e("s_cmp_ge_u32 s2, 0x100\ns_cbranch_scc1 L_end")
    e("s_load_dwordx2 s[4:5], s[0:1], 8\ns_load_dwordx2 s[8:9], s[0:1], 16")
    e("v_readfirstlane_b32 s3, v0\ns_getpc_b64 s[38:39]\nL_pc:")
    if opt.get("map", "div") == "div":
        e("s_and_b32 s58, s2, 31\ns_lshr_b32 s44, s2, 5")
    else:
        e("s_lshr_b32 s58, s2, 3\ns_and_b32 s44, s2, 7")
    e("s_lshl_b32 s58, s58, 7\ns_lshr_b32 s59, s3, 2\ns_add_u32 s58, s58, s59\ns_add_u32 s58, s58, plan_table-L_pc")
    e("s_load_dwordx4 s[40:43], s[38:39], s58")
    e("s_load_dwordx2 s[12:13], s[0:1], 0\ns_load_dwordx2 s[16:17], s[0:1], 24\ns_load_dwordx2 s[36:37], s[0:1], 32")
    e("s_load_dwordx2 s[20:21], s[0:1], 40\ns_load_dwordx2 s[24:25], s[0:1], 48\ns_load_dwordx2 s[28:29], s[0:1], 56")
    e("v_and_b32 v1, 63, v0\nv_and_b32 v2, 15, v0\nv_bfe_u32 v3, v0, 4, 2")
    e("v_bfe_u32 v24, v0, 1, 3\nv_and_b32 v25, 1, v0")
    e("v_lshlrev_b32 v4, 12, v24\nv_lshl_or_b32 v26, v3, 1, v25\nv_lshl_or_b32 v4, v26, 4, v4\nv_add_u32 v5, 0x8000, v4")
    e(f"s_mov_b32 s6, {KV_BYTES}\ns_mov_b32 s7, 0x20000\ns_mov_b32 s10, {KV_BYTES}\ns_mov_b32 s11, 0x20000")
    e("s_lshl_b32 s60, s44, 9\ns_lshr_b32 s3, s3, 6")
    e("s_waitcnt lgkmcnt(0)")
    stamp(1)
    e("s_add_u32 s40, s40, s60")
    for hb in range(2):
        for i in range(4):
            e(f"buffer_load_dwordx4 {vr(Kr(0,hb,i))}, v{4+hb}, s[4:7], s40 offen offset:{128*i} {NT}")
    e("s_add_u32 s41, s41, s60\ns_lshl_b32 s79, s3, 2\ns_load_dword s48, s[36:37], s79")
    e("v_bfrev_b32 v27, 1\nv_add_u32 v28, 8, v24")
    e("v_cmp_gt_u32 vcc, s42, v24\nv_cmp_gt_u32 s[58:59], s42, v28")
    e("v_lshlrev_b32 v6, 13, v3\nv_lshl_or_b32 v6, v2, 4, v6")
    e("v_cndmask_b32 v10, v27, v4, vcc\nv_cndmask_b32 v11, v27, v5, s[58:59]")
    for hb in range(2):
        for i in range(4):
            e(f"buffer_load_dwordx4 {vr(Kr(1,hb,i))}, v{10+hb}, s[4:7], s41 offen offset:{128*i} {NT}")
    e("v_add_u32 v7, 0x1000, v6\nv_add_u32 v8, 0x8000, v6\nv_add_u32 v9, 0x9000, v6")
    e("v_lshlrev_b32 v28, 1, v3\nv_add_u32 v29, 1, v28\nv_add_u32 v30, 8, v28\nv_add_u32 v31, 9, v28")
    for t in range(4): e(f"v_cmp_gt_u32 s[{50+2*t}:{51+2*t}], s42, v{28+t}")
    e("s_and_b32 s45, s43, 15\ns_bfe_u32 s46, s43, 0x20004\ns_bfe_u32 s47, s43, 0x40008")
    for t in range(4): e(f"v_cndmask_b32 v{12+t}, v27, v{6+t}, s[{50+2*t}:{51+2*t}]")
    e("s_mov_b32 s14, 0x10000\ns_mov_b32 s15, 0x20000\ns_mov_b32 s18, 0x1000\ns_mov_b32 s19, 0x20000")
    e("s_mov_b32 s22, 0x10000\ns_mov_b32 s23, 0x20000\ns_mov_b32 s26, 0x100\ns_mov_b32 s27, 0x20000")
    e(f"s_mov_b32 s30, {INBOX_BYTES}\ns_mov_b32 s31, 0x20000\ns_mov_b32 s49, {SCALE:#x}")
    e("s_lshl3_add_u32 s61, s44, s45\ns_lshl_b32 s61, s61, 3\ns_cmp_eq_u32 s46, 1\ns_cselect_b32 s58, 0, s47\ns_cselect_b32 s62, 1, s3")
    e(f"s_add_u32 s61, s61, s58\ns_mul_i32 s61, s61, {ENT}")
    e("v_lshlrev_b32 v17, 4, v1")
    e("s_cmp_lg_u32 s62, 0\ns_cbranch_scc1 L_noclear")
    e(f"v_mov_b32 v{D0}, -1\nv_mov_b32 v{D0+1}, -1\nv_mov_b32 v{D0+2}, -1\nv_mov_b32 v{D0+3}, -1")
    e("s_cmp_eq_u32 s46, 2\ns_cselect_b32 s58, 8, 1\ns_mov_b32 s59, s61")
    e("L_clear:")
    e(f"buffer_store_dwordx4 {vr(D0)}, v17, s[28:31], s59 offen sc1")
    e(f"buffer_store_dwordx4 {vr(D0)}, v17, s[28:31], s59 offen offset:1024 sc1")
    e("s_mov_b64 exec, 0xff")
    e(f"buffer_store_dwordx4 {vr(D0)}, v17, s[28:31], s59 offen offset:2048 sc1")
    e("s_mov_b64 exec, -1")
    e(f"s_add_u32 s59, s59, {8*ENT}\ns_sub_u32 s58, s58, 1\ns_cmp_lg_u32 s58, 0\ns_cbranch_scc1 L_clear")
    e("L_noclear:")
    e("v_lshlrev_b32 v24, 3, v1\ns_lshl_b32 s58, s3, 9")
    e("buffer_load_dwordx2 v[18:19], v24, s[16:19], s58 offen")
    e("s_lshl_b32 s63, s44, 10\ns_cmp_eq_u32 s46, 2\ns_cbranch_scc1 L_shared")

    def vloads(t):
        so = "s40" if t == 0 else "s41"
        for tp in range(4):
            for hf in range(2):
                e(f"buffer_load_dwordx4 {vr(Vr(t,tp,hf))}, v{(6 if t == 0 else 12)+tp}, s[8:11], {so} offen offset:{256*hf} {NT}")
    def signal(tag, younger):
        e(f"s_cmp_lg_u32 s62, 0\ns_cbranch_scc1 L_nosig{tag}")
        e(f"s_waitcnt vmcnt({younger})")
        e("v_mov_b32 v24, 1\ns_lshl_b32 s58, s44, 5\ns_mov_b64 exec, 1")
        e("buffer_atomic_add v24, off, s[24:27], s58 sc1")
        e(f"s_mov_b64 exec, -1\nL_nosig{tag}:")
    def verify():
        e("; compare this wave's row of the block table and its context length with the planned ones")
        e("s_lshl_b32 s58, s3, 6\nv_lshrrev_b32 v24, 5, v1\nv_lshlrev_b32 v25, 1, v1")
        e("v_mad_u32_u24 v24, v24, s58, v25\nv_add_u32 v25, 1, v24")
        e("v_cmp_ne_u32 vcc, v24, v18\nv_cmp_ne_u32 s[58:59], v25, v19")
        e("s_add_u32 s72, s3, 1\ns_mul_i32 s72, s72, 433\ns_and_b32 s72, s72, 511\ns_sub_u32 s72, 0x800, s72")
        e("s_or_b64 vcc, vcc, s[58:59]\ns_or_b32 s58, vcc_lo, vcc_hi")
        e("s_waitcnt lgkmcnt(0)\ns_xor_b32 s72, s72, s48\ns_or_b32 s72, s72, s58")
        if "force" in opt: e(f"s_mov_b32 s72, {opt['force']}")
    S = 224
    M, LS, T0, T1, NG = 232, 233, 234, 235, 236
    def xg(op, r):
        e(f"v_mov_b32 v{T0}, v{r}\ns_nop 1\nv_permlane16_swap_b32 v{r}, v{T0}\n{op} v{r}, v{r}, v{T0}")
        e(f"v_mov_b32 v{T0}, v{r}\ns_nop 1\nv_permlane32_swap_b32 v{r}, v{T0}\n{op} v{r}, v{r}, v{T0}")
    def softmax():
        for t in range(4): e(f"v_cndmask_b32 v{S+4+t}, v{NG}, v{S+4+t}, s[{50+2*t}:{51+2*t}]")
        e(f"v_max3_f32 v{M}, v{S}, v{S+1}, v{S+2}\nv_max3_f32 v{T1}, v{S+3}, v{S+4}, v{S+5}")
        e(f"v_max3_f32 v{M}, v{M}, v{S+6}, v{S+7}\nv_max_f32 v{M}, v{M}, v{T1}")
        xg("v_max_f32", M)
        e(f"v_mul_f32 v{M}, s49, v{M}")
        for t in range(8): e(f"v_fma_f32 v{S+t}, v{S+t}, s49, -v{M}")
        for t in range(8): e(f"v_exp_f32 v{S+t}, v{S+t}")
        e(f"v_add_f32 v{LS}, v{S}, v{S+1}\nv_add_f32 v{T1}, v{S+2}, v{S+3}\nv_add_f32 v{LS}, v{LS}, v{S+4}\nv_add_f32 v{T1}, v{T1}, v{S+5}")
        e(f"v_add_f32 v{LS}, v{LS}, v{S+6}\nv_add_f32 v{T1}, v{T1}, v{S+7}\nv_add_f32 v{LS}, v{LS}, v{T1}")
        xg("v_add_f32", LS)
    def write_ml():
        e(f"v_lshlrev_b32 v24, 6, v2\ns_lshl_b32 s58, s3, 3\ns_add_u32 s58, s58, {ML}\nv_add_u32 v24, s58, v24")
        e(f"s_lshl_b32 s58, s3, 2\ns_add_u32 s58, s58, {OKF}\nv_mov_b32 v25, s58\nv_mov_b32 v26, s72")
        e(f"ds_write_b64 v24, v[{M}:{M+1}]\nds_write_b32 v25, v26")
    def qk_private(t, Dbase):
        for i in range(4):
            for hb in range(2):
                d = Dbase + 4 * hb
                e(f"v_mfma_f32_16x16x32_bf16 {vr(d)}, {vr(Kr(t,hb,i))}, {vr(Q0+4*i)}, {'0' if i == 0 else vr(d)}")
    def fold_private(Dbase, Sbase):
        for hb in range(2):
            for u in range(2):
                d = Dbase + 4 * hb + 2 * u
                e(f"v_mov_b32_dpp v{T1}, v{d} quad_perm:[0,0,2,2] {DPP}")
                e(f"v_add_f32_dpp v{Sbase+2*hb+u}, v{d+1}, v{T1} quad_perm:[1,1,3,3] {DPP}")
    PZ = K0
    def pz(n):
        for t in range(n):
            e(f"v_cvt_pk_bf16_f32 v{S+t}, v{S+t}, v{S+t}")
        for t in range(n):
            for r in range(4): e(f"v_and_b32 v{PZ+4*t+r}, v{S+t}, v{20+r}")
    ACC = 208

    e("v_lshrrev_b32 v16, 3, v2\nv_lshlrev_b32 v16, 9, v16\nv_lshl_or_b32 v16, v26, 4, v16")
    e("s_lshl_b32 s58, s45, 13\ns_add_u32 s63, s63, s58")
    for i in range(4): e(f"buffer_load_dwordx4 {vr(Q0+4*i)}, v16, s[12:15], s63 offen offset:{128*i}")
    vloads(0)
    signal("p", 13)
    vloads(1)
    stamp(2)
    e(f"v_mov_b32 v{NG}, {NEG:#x}\nv_and_b32 v24, 1, v1\nv_lshlrev_b32 v24, 4, v24\nv_mov_b32 v25, 0xffff\nv_lshlrev_b32 v25, v24, v25")
    e("v_bfe_u32 v24, v1, 1, 2")
    for r in range(4): e(f"v_cmp_eq_u32 s[{64+2*r}:{65+2*r}], {r}, v24")
    e("s_nop 0")
    for r in range(4): e(f"v_cndmask_b32 v{20+r}, 0, v25, s[{64+2*r}:{65+2*r}]")
    e("s_waitcnt vmcnt(16)")
    qk_private(0, D0); qk_private(1, D0 + 8)
    verify()
    fold_private(D0, S); fold_private(D0 + 8, S + 4)
    softmax()
    pz(8)
    write_ml()
    for t in range(2):
        for tp in range(4):
            e(f"s_waitcnt vmcnt({14 - 8*t - 2*tp})")
            for hf in range(2):
                first = t == 0 and tp == 0
                e(f"v_mfma_f32_16x16x32_bf16 {vr(ACC+4*hf)}, {vr(Vr(t,tp,hf))}, {vr(PZ+16*t+4*tp)}, {'0' if first else vr(ACC+4*hf)}")
    e("L_pwrite:")
    e(f"v_lshrrev_b32 v24, 3, v2\nv_mul_u32_u24 v24, {ROWS}, v24\nv_and_b32 v25, 7, v1\nv_lshl_or_b32 v25, v3, 3, v25")
    e(f"s_mul_i32 s58, s3, {WAVES}\nv_lshl_add_u32 v24, v25, 4, v24\nv_add_u32 v24, s58, v24\ns_nop 0")
    e(f"ds_write_b128 v24, {vr(ACC)}\nds_write_b128 v24, {vr(ACC+4)} offset:512")
    stamp(3)
    e(f"v_and_b32 v25, 7, v1\nv_lshlrev_b32 v28, 2, v25\nv_add_u32 v28, {OKF}, v28")
    e(f"s_lshl_b32 s58, s3, 9\ns_add_u32 s58, s58, {ML}\nv_lshl_add_u32 v29, v25, 3, s58")
    e(f"s_mul_i32 s58, s3, {ROWS}\nv_add_u32 v30, s58, v17\nv_add_u32 v31, {4*WAVES}, v30")
    e(f"s_add_u32 s32, s28, s61\ns_addc_u32 s33, s29, 0\ns_mul_i32 s34, s47, {ENT}\ns_mov_b32 s35, 0x20000")
    e("s_cmp_eq_u32 s46, 1\ns_cselect_b32 s58, s3, 2\ns_cmp_ge_u32 s58, 2\ns_cbranch_scc1 L_pbar")
    e(f"s_lshl_b32 s58, s3, 10\nv_add_u32 v4, s58, v17\nv_add_u32 v5, {2*ENT}, v4\nv_add_u32 v10, {4*ENT}, v4\nv_add_u32 v11, {6*ENT}, v4")
    e(f"s_lshl_b32 s58, s3, 3\ns_add_u32 s58, s58, 0x800\nv_mov_b32 v24, s58\nv_mov_b32 v25, {ENT}\nv_mad_u32_u24 v12, v2, v25, v24")
    e("v_cmp_gt_u32 s[74:75], s47, v2\nv_cmp_eq_u32 s[76:77], 8, v2")
    e("v_lshrrev_b32 v13, 3, v1\nv_lshlrev_b32 v13, 6, v13\nv_and_b32 v24, 7, v1\nv_lshl_or_b32 v13, v24, 1, v13")
    e("s_lshl_b32 s58, s3, 9\ns_add_u32 s73, s63, s58")
    e("s_lshl_b32 s58, s44, 5\ns_mov_b32 s59, 0x100000")
    e("L_cspin:")
    e("buffer_load_dword v24, off, s[24:27], s58 sc1\ns_waitcnt vmcnt(0)\nv_readfirstlane_b32 s78, v24")
    e(f"s_cmp_ge_u32 s78, {nprod}\ns_cbranch_scc1 L_pbar")
    e("s_sleep 8\ns_sub_u32 s59, s59, 1\ns_cmp_lg_u32 s59, 0\ns_cbranch_scc1 L_cspin")
    e("L_pbar:")
    e("s_waitcnt lgkmcnt(0)\ns_barrier")
    stamp(4)
    R0 = 64
    RM = 96
    LO = 128
    e("ds_read_b32 v24, v28")
    e("s_cmp_ge_u32 s3, 2\ns_cbranch_scc1 L_pidle")
    e("s_cmp_lg_u32 s46, 1\ns_cbranch_scc1 L_pnoremote")
    def remote_loads():
        e(f"buffer_load_dwordx2 v[{RM}:{RM+1}], v12, s[32:35], 0 offen sc1")
        for j in range(8):
            e(f"buffer_load_dwordx4 {vr(R0+4*j)}, v{[4,5,10,11][j//2]}, s[32:35], 0 offen offset:{ENT*(j&1)} sc1")
    remote_loads()
    e("L_pnoremote:")
    e(f"ds_read_b64 v[{M}:{M+1}], v29")
    for w in range(8): e(f"ds_read_b128 {vr(LO+4*w)}, v{30+w//4} offset:{(w%4)*WAVES}")
    e("s_waitcnt lgkmcnt(8)\nv_cmp_ne_u32 vcc, 0, v24")
    def weights8():
        e(f"v_max_f32_dpp v{T0}, v{M}, v{M} quad_perm:[1,0,3,2] {DPP}\ns_cbranch_vccnz L_mismatch\ns_nop 0")
        e(f"v_max_f32_dpp v{T0}, v{T0}, v{T0} quad_perm:[2,3,0,1] {DPP}\ns_nop 1")
        e(f"v_max_f32_dpp v{T0}, v{T0}, v{T0} row_half_mirror {DPP}")
        e(f"v_sub_f32 v{S}, v{M}, v{T0}\nv_exp_f32 v{S}, v{S}\ns_nop 0\nv_mul_f32 v{T1}, v{S}, v{LS}")
    def sumstep(k):
        e(f"v_add_f32_dpp v{T1}, v{T1}, v{T1} {['quad_perm:[1,0,3,2]','quad_perm:[2,3,0,1]','row_half_mirror','row_mirror'][k]} {DPP}")
    weights8()
    for w in range(8):
        e(f"s_waitcnt lgkmcnt({7-w})")
        for i in range(4):
            op = "v_mul_f32_dpp" if w == 0 else "v_fmac_f32_dpp"
            e(f"{op} v{ACC+i}, v{S}, v{LO+4*w+i} row_newbcast:{w} {DPP}")
        if w < 3: sumstep(w)
    e("s_cmp_eq_u32 s46, 1\ns_cbranch_scc1 L_combine")
    for i in range(4): e(f"v_min_u32 v{ACC+i}, -2, v{ACC+i}")
    e(f"v_min_u32 v{T0}, -2, v{T0}\nv_min_u32 v{T1}, -2, v{T1}")
    e("s_lshl_b32 s58, s3, 10\ns_add_u32 s58, s58, s61\ns_lshl3_add_u32 s59, s3, s61")
    e(f"buffer_store_dwordx4 {vr(ACC)}, v17, s[28:31], s58 offen sc1")
    e(f"s_mov_b64 exec, 1\nbuffer_store_dwordx2 v[{T0}:{T1}], off, s[28:31], s59 offset:2048 sc1")
    e("s_branch L_fin")
    e("L_pidle:\ns_waitcnt lgkmcnt(0)\nv_cmp_ne_u32 vcc, 0, v24\ns_cbranch_vccnz L_mismatch\ns_branch L_fin")

    e("L_combine:")
    e("s_mov_b32 s59, 0x100000")
    F, G, W = 100, 104, 108
    e("L_poll:")
    e("s_waitcnt vmcnt(8)")
    e(f"v_cndmask_b32 v{G}, v{T0}, v{RM}, s[74:75]\nv_cndmask_b32 v{G+1}, v{RM+1}, v{T1}, s[76:77]\ns_nop 0")
    e(f"v_max_f32_dpp v{G+2}, v{G}, v{G} quad_perm:[1,0,3,2] {DPP}\ns_nop 1")
    for k in ("quad_perm:[2,3,0,1]", "row_half_mirror", "row_mirror"):
        e(f"v_max_f32_dpp v{G+2}, v{G+2}, v{G+2} {k} {DPP}" + ("" if k == "row_mirror" else "\ns_nop 1"))
    e(f"v_sub_f32 v{W}, v{G}, v{G+2}\nv_exp_f32 v{W}, v{W}\ns_nop 0\nv_mul_f32 v{G+3}, v{W}, v{G+1}\ns_nop 0")
    steps = ["quad_perm:[1,0,3,2]", "quad_perm:[2,3,0,1]", "row_half_mirror", "row_mirror"]
    for i in range(4): e(f"v_mul_f32_dpp v{F+i}, v{W}, v{ACC+i} row_newbcast:8 {DPP}")
    for j in range(8):
        if j < 4: e(f"v_add_f32_dpp v{G+3}, v{G+3}, v{G+3} {steps[j]} {DPP}")
        if j == 4: e(f"v_rcp_f32 v{G+3}, v{G+3}")
        e(f"s_waitcnt vmcnt({7-j})")
        for i in range(4): e(f"v_fmac_f32_dpp v{F+i}, v{W}, v{R0+4*j+i} row_newbcast:{j} {DPP}")
    for i in range(4): e(f"v_mul_f32 v{F+i}, v{F+i}, v{G+3}")
    e(f"v_cmp_u_f32 vcc, v{F}, v{F+1}\nv_cmp_u_f32 s[78:79], v{F+2}, v{F+3}")
    e(f"v_cvt_pk_bf16_f32 v{G}, v{F}, v{F+1}\nv_cvt_pk_bf16_f32 v{G+1}, v{F+2}, v{F+3}")
    e("s_or_b64 vcc, vcc, s[78:79]\ns_cbranch_scc1 L_check")
    e("L_store:")
    e(f"buffer_store_short v{G}, v13, s[20:23], s73 offen\nbuffer_store_short_d16_hi v{G}, v13, s[20:23], s73 offen offset:16")
    e(f"buffer_store_short v{G+1}, v13, s[20:23], s73 offen offset:32\nbuffer_store_short_d16_hi v{G+1}, v13, s[20:23], s73 offen offset:48")
    e("s_branch L_fin")
    e("L_check:")
    e(f"v_max_u32 v{W}, v{RM}, v{RM+1}")
    for k in range(16): e(f"v_max3_u32 v{W}, v{W}, v{R0+2*k}, v{R0+2*k+1}")
    e(f"v_cmp_eq_u32 vcc, -1, v{W}\ns_cbranch_vccz L_store")
    e("s_sub_u32 s59, s59, 1\ns_cmp_eq_u32 s59, 0\ns_cbranch_scc1 L_store")
    remote_loads()
    e("s_branch L_poll")

    e("L_shared:")
    e("v_lshrrev_b32 v16, 1, v2\nv_lshlrev_b32 v16, 13, v16\nv_and_b32 v24, 1, v2\nv_lshl_or_b32 v16, v24, 9, v16\nv_lshl_or_b32 v16, v3, 5, v16")
    for i in range(4):
        for c in range(2): e(f"buffer_load_dwordx4 {vr(Q0+16*c+4*i)}, v16, s[12:15], s63 offen offset:{128*i+16*c}")
    vloads(0)
    signal("s", 17)
    vloads(1)
    stamp(2)
    e(f"v_mov_b32 v{NG}, {NEG:#x}\ns_mov_b32 s64, 0x05040100\ns_mov_b32 s65, 0x07060302")
    e("s_waitcnt vmcnt(16)")
    for t in range(2):
        for i in range(4):
            for hb in range(2):
                for c in range(2):
                    d = D0 + 16 * t + 8 * hb + 4 * c
                    e(f"v_mfma_f32_16x16x32_bf16 {vr(d)}, {vr(Kr(t,hb,i))}, {vr(Q0+16*c+4*i)}, {'0' if i == 0 else vr(d)}")
    verify()
    for t in range(2):
        for hb in range(2):
            for u in range(2):
                d = D0 + 16 * t + 8 * hb
                e(f"v_add_f32 v{S+4*t+2*hb+u}, v{d+2*u}, v{d+4+2*u+1}")
    softmax()
    PB = 240
    for a in range(4): e(f"v_cvt_pk_bf16_f32 v{PB+a}, v{S+2*a}, v{S+2*a+1}")
    write_ml()
    e(f"v_mul_u32_u24 v24, {ROWS}, v2\nv_lshl_add_u32 v24, v3, 7, v24\ns_mul_i32 s58, s3, {WAVES}\nv_add_u32 v24, s58, v24")
    def Ar(hf, j): return K0 + 32 * hf + 4 * j
    def Or(hf, j): return (Q0 if hf == 0 else D0) + 4 * j
    def perms(a, hf):
        t, tp = a >> 1, 2 * (a & 1)
        for j in range(8):
            e(f"v_perm_b32 v{Ar(hf,j)+a}, v{Vr(t,tp+1,hf)+j//2}, v{Vr(t,tp,hf)+j//2}, s{64+(j&1)}")
    for a in range(3):
        e(f"s_waitcnt vmcnt({12-4*a})")
        perms(a, 0); perms(a, 1)
    e("s_waitcnt vmcnt(1)")
    perms(3, 0)
    e("s_waitcnt vmcnt(0)")
    for j in range(8):
        t, tp = 1, 2
        e(f"v_perm_b32 v{Ar(1,j)+3}, v{Vr(t,tp+1,1)+j//2}, v{Vr(t,tp,1)+j//2}, s{64+(j&1)}")
        e(f"v_mfma_f32_16x16x32_bf16 {vr(Or(0,j))}, {vr(Ar(0,j))}, {vr(PB)}, 0")
    for j in range(8):
        e(f"v_mfma_f32_16x16x32_bf16 {vr(Or(1,j))}, {vr(Ar(1,j))}, {vr(PB)}, 0")
        e(f"ds_write_b128 v24, {vr(Or(0,j))} offset:{16*j}")
    e(f"v_and_b32 v25, 7, v1\nv_lshlrev_b32 v28, 2, v25\nv_add_u32 v28, {OKF}, v28")
    for j in range(8): e(f"ds_write_b128 v24, {vr(Or(1,j))} offset:{512+16*j}")
    stamp(3)
    e(f"s_lshl_b32 s58, s3, 7\ns_add_u32 s58, s58, {ML}\nv_lshl_add_u32 v29, v2, 3, s58")
    e(f"s_mul_i32 s58, s3, {2*ROWS}\nv_add_u32 v30, s58, v17\nv_add_u32 v31, {4*WAVES}, v30")
    e(f"s_mul_i32 s58, s3, {8*ENT}\ns_add_u32 s58, s58, s61")
    e("s_waitcnt lgkmcnt(0)\ns_barrier")
    stamp(4)
    e(f"ds_read_b32 v24, v28\nds_read_b64 v[{M}:{M+1}], v29")
    def lo(r, w): return 64 + 32 * r + 4 * w
    for w in range(6):
        for r in range(2): e(f"ds_read_b128 {vr(lo(r,w))}, v{30+w//4} offset:{(w%4)*WAVES+r*ROWS}")
    e("s_waitcnt lgkmcnt(12)\nv_cmp_ne_u32 vcc, 0, v24")
    weights8()
    for w in range(8):
        if w < 2:
            for r in range(2): e(f"ds_read_b128 {vr(lo(r,6+w))}, v31 offset:{(2+w)*WAVES+r*ROWS}")
        e(f"s_waitcnt lgkmcnt({12 if w < 2 else 14-2*w})")
        for r in range(2):
            for i in range(4):
                op = "v_mul_f32_dpp" if w == 0 else "v_fmac_f32_dpp"
                e(f"{op} v{ACC+4*r+i}, v{S}, v{lo(r,w)+i} row_newbcast:{8*r+w} {DPP}")
        if w < 3: sumstep(w)
    for i in range(8): e(f"v_min_u32 v{ACC+i}, -2, v{ACC+i}")
    e(f"v_min_u32 v{T0}, -2, v{T0}\nv_min_u32 v{T1}, -2, v{T1}")
    e(f"buffer_store_dwordx4 {vr(ACC)}, v17, s[28:31], s58 offen sc1")
    e(f"buffer_store_dwordx4 {vr(ACC+4)}, v17, s[28:31], s58 offen offset:1024 sc1")
    e(f"s_mov_b64 exec, 0x101\nbuffer_store_dwordx2 v[{T0}:{T1}], v1, s[28:31], s58 offen offset:2048 sc1")
    e("L_fin:")
    if PROF:
        e("s_waitcnt vmcnt(0)")
        stamp(5)
        e("s_mov_b64 exec, 1\ns_getreg_b32 s58, hwreg(HW_REG_XCC_ID)\ns_waitcnt lgkmcnt(0)")
        for n in range(6): e(f"v_mov_b32 v{64+n}, s{80+2*n}")
        e("v_mov_b32 v70, s58\nv_mov_b32 v71, s59")
        e("s_lshl3_add_u32 s58, s2, s3\ns_lshl_b32 s58, s58, 5\ns_add_u32 s58, s58, 0x200000\ns_mov_b32 s30, 0x400000")
        e("buffer_store_dwordx4 v[64:67], off, s[28:31], s58\nbuffer_store_dwordx4 v[68:71], off, s[28:31], s58 offset:16")
    e("L_end:\ns_endpgm")

    e("L_mismatch:")
    e("s_cmp_lg_u32 s46, 1\ns_cbranch_scc1 L_end")
    e("s_waitcnt vmcnt(0) lgkmcnt(0)\ns_barrier")
    e("s_lshl_b32 s58, s45, 2\ns_load_dword s48, s[36:37], s58")
    e("v_bfe_u32 v24, v0, 1, 3\nv_and_b32 v25, 1, v0")
    e("v_lshlrev_b32 v4, 12, v24\nv_lshl_or_b32 v26, v3, 1, v25\nv_lshl_or_b32 v4, v26, 4, v4\nv_add_u32 v5, 0x8000, v4")
    e("v_lshlrev_b32 v28, 1, v3\nv_add_u32 v29, 1, v28\nv_add_u32 v30, 8, v28\nv_add_u32 v31, 9, v28")
    MR, AL = 237, 238
    e(f"v_mov_b32 v{MR}, v{NG}\nv_mov_b32 v{LS}, 0")
    for i in range(8): e(f"v_mov_b32 v{ACC+i}, 0")
    e("s_mov_b32 s47, 0\ns_mov_b32 s72, 0\ns_mov_b32 s74, s3\ns_waitcnt lgkmcnt(0)")
    e("s_min_i32 s48, s48, 0x800\ns_cmp_gt_i32 s48, 0\ns_cselect_b32 s75, s48, 0x800\ns_max_i32 s48, s48, 0")
    e("L_gloop:")
    e("s_lshl_b32 s76, s74, 4\ns_cmp_ge_u32 s76, s75\ns_cbranch_scc1 L_gdone")
    e("s_lshl_b32 s58, s45, 7\ns_add_u32 s58, s58, s74\ns_lshl_b32 s58, s58, 2\ns_load_dword s77, s[16:17], s58")
    e("s_sub_i32 s76, s48, s76")
    for t in range(4): e(f"v_cmp_gt_i32 s[{50+2*t}:{51+2*t}], s76, v{28+t}")
    e("s_waitcnt lgkmcnt(0)\ns_min_u32 s77, s77, 575\ns_lshl_b32 s77, s77, 16\ns_add_u32 s40, s77, s60")
    for hb in range(2):
        for i in range(4):
            e(f"buffer_load_dwordx4 {vr(Kr(1,hb,i))}, v{4+hb}, s[4:7], s40 offen offset:{128*i}")
    for tp in range(4):
        for hf in range(2):
            e(f"buffer_load_dwordx4 {vr(Vr(0,tp,hf))}, v{6+tp}, s[8:11], s40 offen offset:{256*hf}")
    e("s_waitcnt vmcnt(8)")
    qk_private(1, D0)
    e("s_nop 7")
    fold_private(D0, S)
    for t in range(4): e(f"v_cndmask_b32 v{S+t}, v{NG}, v{S+t}, s[{50+2*t}:{51+2*t}]")
    e(f"v_max3_f32 v{M}, v{S}, v{S+1}, v{S+2}\nv_max3_f32 v{M}, v{M}, v{S+3}, v{MR}")
    xg("v_max_f32", M)
    e(f"v_mul_f32 v{T1}, s49, v{M}\nv_mul_f32 v{AL}, s49, v{MR}\nv_sub_f32 v{AL}, v{AL}, v{T1}\nv_exp_f32 v{AL}, v{AL}\nv_mov_b32 v{MR}, v{M}")
    for t in range(4): e(f"v_fma_f32 v{S+t}, v{S+t}, s49, -v{T1}")
    for t in range(4): e(f"v_exp_f32 v{S+t}, v{S+t}")
    e(f"v_mul_f32 v{LS}, v{LS}, v{AL}")
    for t in range(4): e(f"v_add_f32 v{LS}, v{LS}, v{S+t}")
    for i in range(8): e(f"v_mul_f32 v{ACC+i}, v{ACC+i}, v{AL}")
    pz(4)
    e("s_waitcnt vmcnt(0)\ns_nop 0")
    for tp in range(4):
        for hf in range(2):
            e(f"v_mfma_f32_16x16x32_bf16 {vr(ACC+4*hf)}, {vr(Vr(0,tp,hf))}, {vr(PZ+4*tp)}, {vr(ACC+4*hf)}")
    e("s_add_u32 s74, s74, 8\ns_branch L_gloop")
    e("L_gdone:")
    xg("v_add_f32", LS)
    e(f"v_mul_f32 v{M}, s49, v{MR}")
    write_ml()
    e("s_branch L_pwrite")

    e(".p2align 7\n.type plan_table,@object\nplan_table:")
    for role, b, j, tiles in plan:
        assert 8 <= len(tiles) <= 16
        for w in range(8):
            t0 = tiles[w]; assert t0[1] == 16
            t1 = tiles[8 + w] if 8 + w < len(tiles) else (0, 0)
            e(f".long {t0[0]*65536:#x}, {t1[0]*65536:#x}, {t1[1]}, {b | role << 4 | j << 8:#x}")
    e(".size plan_table, 4096")
    e(f'.section .rodata,"a"\n.p2align 6\n.amdhsa_kernel {KNAME}')
    e(".amdhsa_next_free_vgpr 256\n.amdhsa_next_free_sgpr 102\n.amdhsa_accum_offset 256")
    e(".amdhsa_group_segment_fixed_size 0\n.amdhsa_kernarg_size 64\n.amdhsa_user_sgpr_count 2")
    e(".amdhsa_user_sgpr_kernarg_segment_ptr 1\n.amdhsa_system_sgpr_workgroup_id_x 1")
    e(".amdhsa_float_denorm_mode_32 3\n.end_amdhsa_kernel")
    text = "\n".join(L) + "\n"
    bad = check(text)
    for b in bad: print("HAZARD need %d have %d: %s -> %s" % b, file=sys.stderr)
    assert not bad
    return text

if __name__ == "__main__":
    import json
    opt = json.loads(sys.argv[2]) if len(sys.argv) > 2 else {}
    open(sys.argv[1], "w").write(gen(opt))
    for w in make_plan(opt): print(w[0], w[1], w[2], len(w[3]), w[3][0], w[3][-1])
```

```python
import sys
from hazard import check

KNAME = "standalone__paged_block_table_kv_radixattention__sampling_kernel"
KV_BYTES = 576 * 65536
ENT = 2176
INBOX_BYTES = 512 * ENT
ROWS, WAVES = 1040, 16640
ML = 8 * WAVES
OKF = ML + 1024
LDS = OKF + 64
CTX = [2048 - ((b + 1) * 2654435761) % 512 for b in range(8)]
NEG = 0xF1800000
SCALE = 0x3DB8AA3B
DPP = "row_mask:0xf bank_mask:0xf"

def make_plan(opt):
    ks = opt.get("ks", [5, 3, 3, 3, 4, 4, 4, 3, 3])
    bias = opt.get("bias", 0)
    wgs = []
    def split(n, k, first):
        rest = n - first
        sizes = [first] + [rest // (k - 1) + (1 if x < rest % (k - 1) else 0) for x in range(k - 1)]
        return sizes
    n, k = 64, ks[0]
    p = 0
    for s in range(k):
        sz = n // k + (1 if s < n % k else 0)
        wgs.append((2, 0, s, [(x, 16) for x in range(p, p + sz)])); p += sz
    for b in range(8):
        nb = (CTX[b] + 15) // 16 - 64
        k = ks[1 + b]
        first = max(8, min(16, nb // k + bias))
        while max(split(nb, k, first)) > 16: first += 1
        p = 0
        for s, sz in enumerate(split(nb, k, first)):
            tiles = [(64 + 64 * b + x, min(16, CTX[b] - 1024 - 16 * x)) for x in range(p, p + sz)]
            p += sz
            wgs.append((1, b, ks[0] + k - 1, tiles) if s == 0 else (0, b, ks[0] + s - 1, tiles))
    assert len(wgs) == 32
    order = opt.get("order")
    if order: wgs = [wgs[x] for x in order]
    return wgs

def gen(opt=None):
    opt = opt or {}
    NT = opt.get("nt", "nt")
    PROF = opt.get("prof", False)
    L = []
    def e(s):
        for x in s.split("\n"):
            x = x.strip()
            if x: L.append(x if x.endswith(":") or x.startswith(".") or x.startswith(";") else "    " + x)
    plan = make_plan(opt)
    nprod = sum(1 for w in plan if w[0] != 1)
    K0, V0, Q0, D0 = 64, 128, 32, 192
    def vr(a, n=4): return f"v[{a}:{a+n-1}]"
    def Kr(t, hb, i): return K0 + t * 32 + hb * 16 + i * 4
    def Vr(t, tp, hf): return V0 + t * 32 + tp * 8 + hf * 4
    def stamp(n):
        if PROF: e(f"s_memrealtime s[{80+2*n}:{81+2*n}]")

    e(f"; @launch grid=(256,1,1) block=(512,1,1) lds={LDS}")
    e('.amdgcn_target "amdgcn-amd-amdhsa--gfx950"\n.text')
    e(f".globl {KNAME}\n.p2align 8\n.type {KNAME},@function\n{KNAME}:")
    stamp(0)
    if "hold" in opt: e("s_memrealtime s[94:95]")
    e("s_cmp_ge_u32 s2, 0x100\ns_cbranch_scc1 L_end")
    e("s_load_dwordx2 s[4:5], s[0:1], 8\ns_load_dwordx2 s[8:9], s[0:1], 16")
    e("v_readfirstlane_b32 s3, v0\ns_getpc_b64 s[38:39]\nL_pc:")
    if opt.get("map", "div") == "div":
        e("s_and_b32 s58, s2, 31\ns_lshr_b32 s44, s2, 5")
    else:
        e("s_lshr_b32 s58, s2, 3\ns_and_b32 s44, s2, 7")
    e("s_lshl_b32 s58, s58, 7\ns_lshr_b32 s59, s3, 2\ns_add_u32 s58, s58, s59\ns_add_u32 s58, s58, plan_table-L_pc")
    e("s_load_dwordx4 s[40:43], s[38:39], s58")
    e("s_load_dwordx2 s[12:13], s[0:1], 0\ns_load_dwordx2 s[16:17], s[0:1], 24\ns_load_dwordx2 s[36:37], s[0:1], 32")
    e("s_load_dwordx2 s[20:21], s[0:1], 40\ns_load_dwordx2 s[24:25], s[0:1], 48\ns_load_dwordx2 s[28:29], s[0:1], 56")
    e("v_and_b32 v1, 63, v0\nv_and_b32 v2, 15, v0\nv_bfe_u32 v3, v0, 4, 2")
    e("v_bfe_u32 v24, v0, 1, 3\nv_and_b32 v25, 1, v0")
    e("v_lshlrev_b32 v4, 12, v24\nv_lshl_or_b32 v26, v3, 1, v25\nv_lshl_or_b32 v4, v26, 4, v4\nv_add_u32 v5, 0x8000, v4")
    e(f"s_mov_b32 s6, {KV_BYTES}\ns_mov_b32 s7, 0x20000\ns_mov_b32 s10, {KV_BYTES}\ns_mov_b32 s11, 0x20000")
    e("s_lshl_b32 s60, s44, 9\ns_lshr_b32 s3, s3, 6")
    e("s_waitcnt lgkmcnt(0)")
    stamp(1)
    e("s_add_u32 s40, s40, s60")
    for hb in range(2):
        for i in range(4):
            e(f"buffer_load_dwordx4 {vr(Kr(0,hb,i))}, v{4+hb}, s[4:7], s40 offen offset:{128*i} {NT}")
    e("s_add_u32 s41, s41, s60\ns_lshl_b32 s79, s3, 2\ns_load_dword s48, s[36:37], s79")
    e("v_bfrev_b32 v27, 1\nv_add_u32 v28, 8, v24")
    e("v_cmp_gt_u32 vcc, s42, v24\nv_cmp_gt_u32 s[58:59], s42, v28")
    e("v_lshlrev_b32 v6, 13, v3\nv_lshl_or_b32 v6, v2, 4, v6")
    e("v_cndmask_b32 v10, v27, v4, vcc\nv_cndmask_b32 v11, v27, v5, s[58:59]")
    for hb in range(2):
        for i in range(4):
            e(f"buffer_load_dwordx4 {vr(Kr(1,hb,i))}, v{10+hb}, s[4:7], s41 offen offset:{128*i} {NT}")
    e("v_add_u32 v7, 0x1000, v6\nv_add_u32 v8, 0x8000, v6\nv_add_u32 v9, 0x9000, v6")
    e("v_lshlrev_b32 v28, 1, v3\nv_add_u32 v29, 1, v28\nv_add_u32 v30, 8, v28\nv_add_u32 v31, 9, v28")
    for t in range(4): e(f"v_cmp_gt_u32 s[{50+2*t}:{51+2*t}], s42, v{28+t}")
    e("s_and_b32 s45, s43, 15\ns_bfe_u32 s46, s43, 0x20004\ns_bfe_u32 s47, s43, 0x40008")
    for t in range(4): e(f"v_cndmask_b32 v{12+t}, v27, v{6+t}, s[{50+2*t}:{51+2*t}]")
    e("s_mov_b32 s14, 0x10000\ns_mov_b32 s15, 0x20000\ns_mov_b32 s18, 0x1000\ns_mov_b32 s19, 0x20000")
    e("s_mov_b32 s22, 0x10000\ns_mov_b32 s23, 0x20000\ns_mov_b32 s26, 0x100\ns_mov_b32 s27, 0x20000")
    e(f"s_mov_b32 s30, {INBOX_BYTES}\ns_mov_b32 s31, 0x20000\ns_mov_b32 s49, {SCALE:#x}")
    e("s_lshl3_add_u32 s61, s44, s45\ns_lshl_b32 s61, s61, 3\ns_cmp_eq_u32 s46, 1\ns_cselect_b32 s58, 0, s47\ns_cselect_b32 s62, 1, s3")
    e(f"s_add_u32 s61, s61, s58\ns_mul_i32 s61, s61, {ENT}")
    e("v_lshlrev_b32 v17, 4, v1")
    e("s_cmp_lg_u32 s62, 0\ns_cbranch_scc1 L_noclear")
    e(f"v_mov_b32 v{D0}, -1\nv_mov_b32 v{D0+1}, -1\nv_mov_b32 v{D0+2}, -1\nv_mov_b32 v{D0+3}, -1")
    e("s_cmp_eq_u32 s46, 2\ns_cselect_b32 s58, 8, 1\ns_mov_b32 s59, s61")
    e("L_clear:")
    e(f"buffer_store_dwordx4 {vr(D0)}, v17, s[28:31], s59 offen sc1")
    e(f"buffer_store_dwordx4 {vr(D0)}, v17, s[28:31], s59 offen offset:1024 sc1")
    e("s_mov_b64 exec, 0xff")
    e(f"buffer_store_dwordx4 {vr(D0)}, v17, s[28:31], s59 offen offset:2048 sc1")
    e("s_mov_b64 exec, -1")
    e(f"s_add_u32 s59, s59, {8*ENT}\ns_sub_u32 s58, s58, 1\ns_cmp_lg_u32 s58, 0\ns_cbranch_scc1 L_clear")
    e("L_noclear:")
    e("v_lshlrev_b32 v24, 3, v1\ns_lshl_b32 s58, s3, 9")
    e("buffer_load_dwordx2 v[18:19], v24, s[16:19], s58 offen")
    e("s_lshl_b32 s63, s44, 10\ns_cmp_eq_u32 s46, 2\ns_cbranch_scc1 L_shared")

    def vloads(t):
        so = "s40" if t == 0 else "s41"
        for tp in range(4):
            for hf in range(2):
                e(f"buffer_load_dwordx4 {vr(Vr(t,tp,hf))}, v{(6 if t == 0 else 12)+tp}, s[8:11], {so} offen offset:{256*hf} {NT}")
    def signal(tag, younger):
        e(f"s_cmp_lg_u32 s62, 0\ns_cbranch_scc1 L_nosig{tag}")
        e(f"s_waitcnt vmcnt({younger})")
        e("v_mov_b32 v24, 1\ns_lshl_b32 s58, s44, 5\ns_mov_b64 exec, 1")
        e("buffer_atomic_add v24, off, s[24:27], s58 sc1")
        e(f"s_mov_b64 exec, -1\nL_nosig{tag}:")
    def verify():
        e("; compare this wave's row of the block table and its context length with the planned ones")
        e("s_lshl_b32 s58, s3, 6\nv_lshrrev_b32 v24, 5, v1\nv_lshlrev_b32 v25, 1, v1")
        e("v_mad_u32_u24 v24, v24, s58, v25\nv_add_u32 v25, 1, v24")
        e("v_cmp_ne_u32 vcc, v24, v18\nv_cmp_ne_u32 s[58:59], v25, v19")
        e("s_add_u32 s72, s3, 1\ns_mul_i32 s72, s72, 433\ns_and_b32 s72, s72, 511\ns_sub_u32 s72, 0x800, s72")
        e("s_or_b64 vcc, vcc, s[58:59]\ns_or_b32 s58, vcc_lo, vcc_hi")
        e("s_waitcnt lgkmcnt(0)\ns_xor_b32 s72, s72, s48\ns_or_b32 s72, s72, s58")
        if "force" in opt: e(f"s_mov_b32 s72, {opt['force']}")
    S = 224
    M, LS, T0, T1, NG = 232, 233, 234, 235, 236
    def xg(op, r):
        e(f"v_mov_b32 v{T0}, v{r}\ns_nop 1\nv_permlane16_swap_b32 v{r}, v{T0}\n{op} v{r}, v{r}, v{T0}")
        e(f"v_mov_b32 v{T0}, v{r}\ns_nop 1\nv_permlane32_swap_b32 v{r}, v{T0}\n{op} v{r}, v{r}, v{T0}")
    def softmax():
        for t in range(4): e(f"v_cndmask_b32 v{S+4+t}, v{NG}, v{S+4+t}, s[{50+2*t}:{51+2*t}]")
        e(f"v_max3_f32 v{M}, v{S}, v{S+1}, v{S+2}\nv_max3_f32 v{T1}, v{S+3}, v{S+4}, v{S+5}")
        e(f"v_max3_f32 v{M}, v{M}, v{S+6}, v{S+7}\nv_max_f32 v{M}, v{M}, v{T1}")
        xg("v_max_f32", M)
        e(f"v_mul_f32 v{M}, s49, v{M}")
        for t in range(8): e(f"v_fma_f32 v{S+t}, v{S+t}, s49, -v{M}")
        for t in range(8): e(f"v_exp_f32 v{S+t}, v{S+t}")
        e(f"v_add_f32 v{LS}, v{S}, v{S+1}\nv_add_f32 v{T1}, v{S+2}, v{S+3}\nv_add_f32 v{LS}, v{LS}, v{S+4}\nv_add_f32 v{T1}, v{T1}, v{S+5}")
        e(f"v_add_f32 v{LS}, v{LS}, v{S+6}\nv_add_f32 v{T1}, v{T1}, v{S+7}\nv_add_f32 v{LS}, v{LS}, v{T1}")
        xg("v_add_f32", LS)
    def write_ml():
        e(f"v_lshlrev_b32 v24, 6, v2\ns_lshl_b32 s58, s3, 3\ns_add_u32 s58, s58, {ML}\nv_add_u32 v24, s58, v24")
        e(f"s_lshl_b32 s58, s3, 2\ns_add_u32 s58, s58, {OKF}\nv_mov_b32 v25, s58\nv_mov_b32 v26, s72")
        e(f"ds_write_b64 v24, v[{M}:{M+1}]\nds_write_b32 v25, v26")
    def qk_private(t, Dbase):
        for i in range(4):
            for hb in range(2):
                d = Dbase + 4 * hb
                e(f"v_mfma_f32_16x16x32_bf16 {vr(d)}, {vr(Kr(t,hb,i))}, {vr(Q0+4*i)}, {'0' if i == 0 else vr(d)}")
    def fold_private(Dbase, Sbase):
        for hb in range(2):
            for u in range(2):
                d = Dbase + 4 * hb + 2 * u
                e(f"v_mov_b32_dpp v{T1}, v{d} quad_perm:[0,0,2,2] {DPP}")
                e(f"v_add_f32_dpp v{Sbase+2*hb+u}, v{d+1}, v{T1} quad_perm:[1,1,3,3] {DPP}")
    PZ = K0
    def pz(n):
        for t in range(n):
            e(f"v_cvt_pk_bf16_f32 v{S+t}, v{S+t}, v{S+t}")
        for t in range(n):
            for r in range(4): e(f"v_and_b32 v{PZ+4*t+r}, v{S+t}, v{20+r}")
    ACC = 208

    e("v_lshrrev_b32 v16, 3, v2\nv_lshlrev_b32 v16, 9, v16\nv_lshl_or_b32 v16, v26, 4, v16")
    e("s_lshl_b32 s58, s45, 13\ns_add_u32 s63, s63, s58")
    for i in range(4): e(f"buffer_load_dwordx4 {vr(Q0+4*i)}, v16, s[12:15], s63 offen offset:{128*i}")
    vloads(0)
    signal("p", 13)
    vloads(1)
    stamp(2)
    e(f"v_mov_b32 v{NG}, {NEG:#x}\nv_and_b32 v24, 1, v1\nv_lshlrev_b32 v24, 4, v24\nv_mov_b32 v25, 0xffff\nv_lshlrev_b32 v25, v24, v25")
    e("v_bfe_u32 v24, v1, 1, 2")
    for r in range(4): e(f"v_cmp_eq_u32 s[{64+2*r}:{65+2*r}], {r}, v24")
    e("s_nop 0")
    for r in range(4): e(f"v_cndmask_b32 v{20+r}, 0, v25, s[{64+2*r}:{65+2*r}]")
    e("s_waitcnt vmcnt(16)")
    qk_private(0, D0); qk_private(1, D0 + 8)
    verify()
    fold_private(D0, S); fold_private(D0 + 8, S + 4)
    softmax()
    pz(8)
    write_ml()
    for t in range(2):
        for tp in range(4):
            e(f"s_waitcnt vmcnt({14 - 8*t - 2*tp})")
            for hf in range(2):
                first = t == 0 and tp == 0
                e(f"v_mfma_f32_16x16x32_bf16 {vr(ACC+4*hf)}, {vr(Vr(t,tp,hf))}, {vr(PZ+16*t+4*tp)}, {'0' if first else vr(ACC+4*hf)}")
    e("L_pwrite:")
    e(f"v_lshrrev_b32 v24, 3, v2\nv_mul_u32_u24 v24, {ROWS}, v24\nv_and_b32 v25, 7, v1\nv_lshl_or_b32 v25, v3, 3, v25")
    e(f"s_mul_i32 s58, s3, {WAVES}\nv_lshl_add_u32 v24, v25, 4, v24\nv_add_u32 v24, s58, v24\ns_nop 0")
    e(f"ds_write_b128 v24, {vr(ACC)}\nds_write_b128 v24, {vr(ACC+4)} offset:512")
    stamp(3)
    e(f"v_and_b32 v25, 7, v1\nv_lshlrev_b32 v28, 2, v25\nv_add_u32 v28, {OKF}, v28")
    e(f"s_lshl_b32 s58, s3, 9\ns_add_u32 s58, s58, {ML}\nv_lshl_add_u32 v29, v25, 3, s58")
    e(f"s_mul_i32 s58, s3, {ROWS}\nv_add_u32 v30, s58, v17\nv_add_u32 v31, {4*WAVES}, v30")
    e(f"s_add_u32 s32, s28, s61\ns_addc_u32 s33, s29, 0\ns_mul_i32 s34, s47, {ENT}\ns_mov_b32 s35, 0x20000")
    e("s_cmp_eq_u32 s46, 1\ns_cselect_b32 s58, s3, 2\ns_cmp_ge_u32 s58, 2\ns_cbranch_scc1 L_pbar")
    e(f"s_lshl_b32 s58, s3, 10\nv_add_u32 v4, s58, v17\nv_add_u32 v5, {2*ENT}, v4\nv_add_u32 v10, {4*ENT}, v4\nv_add_u32 v11, {6*ENT}, v4")
    e(f"s_lshl_b32 s58, s3, 3\ns_add_u32 s58, s58, 0x800\nv_mov_b32 v24, s58\nv_mov_b32 v25, {ENT}\nv_mad_u32_u24 v12, v2, v25, v24")
    e("v_cmp_gt_u32 s[74:75], s47, v2\nv_cmp_eq_u32 s[76:77], 8, v2")
    e("v_lshrrev_b32 v13, 3, v1\nv_lshlrev_b32 v13, 6, v13\nv_and_b32 v24, 7, v1\nv_lshl_or_b32 v13, v24, 1, v13")
    e("s_lshl_b32 s58, s3, 9\ns_add_u32 s73, s63, s58")
    e("s_lshl_b32 s58, s44, 5\ns_mov_b32 s59, 0x100000")
    e("L_cspin:")
    e("buffer_load_dword v24, off, s[24:27], s58 sc1\ns_waitcnt vmcnt(0)\nv_readfirstlane_b32 s78, v24")
    e(f"s_cmp_ge_u32 s78, {nprod}\ns_cbranch_scc1 L_pbar")
    e("s_sleep 8\ns_sub_u32 s59, s59, 1\ns_cmp_lg_u32 s59, 0\ns_cbranch_scc1 L_cspin")
    e("L_pbar:")
    e("s_waitcnt lgkmcnt(0)\ns_barrier")
    stamp(4)
    R0 = 64
    RM = 96
    LO = 128
    e("ds_read_b32 v24, v28")
    e("s_cmp_ge_u32 s3, 2\ns_cbranch_scc1 L_pidle")
    e("s_cmp_lg_u32 s46, 1\ns_cbranch_scc1 L_pnoremote")
    def remote_loads():
        e(f"buffer_load_dwordx2 v[{RM}:{RM+1}], v12, s[32:35], 0 offen sc1")
        for j in range(8):
            e(f"buffer_load_dwordx4 {vr(R0+4*j)}, v{[4,5,10,11][j//2]}, s[32:35], 0 offen offset:{ENT*(j&1)} sc1")
    remote_loads()
    e("L_pnoremote:")
    e(f"ds_read_b64 v[{M}:{M+1}], v29")
    for w in range(8): e(f"ds_read_b128 {vr(LO+4*w)}, v{30+w//4} offset:{(w%4)*WAVES}")
    e("s_waitcnt lgkmcnt(8)\nv_cmp_ne_u32 vcc, 0, v24")
    def weights8():
        e(f"v_max_f32_dpp v{T0}, v{M}, v{M} quad_perm:[1,0,3,2] {DPP}\ns_cbranch_vccnz L_mismatch\ns_nop 0")
        e(f"v_max_f32_dpp v{T0}, v{T0}, v{T0} quad_perm:[2,3,0,1] {DPP}\ns_nop 1")
        e(f"v_max_f32_dpp v{T0}, v{T0}, v{T0} row_half_mirror {DPP}")
        e(f"v_sub_f32 v{S}, v{M}, v{T0}\nv_exp_f32 v{S}, v{S}\ns_nop 0\nv_mul_f32 v{T1}, v{S}, v{LS}")
    def sumstep(k):
        e(f"v_add_f32_dpp v{T1}, v{T1}, v{T1} {['quad_perm:[1,0,3,2]','quad_perm:[2,3,0,1]','row_half_mirror','row_mirror'][k]} {DPP}")
    weights8()
    for w in range(8):
        e(f"s_waitcnt lgkmcnt({7-w})")
        for i in range(4):
            op = "v_mul_f32_dpp" if w == 0 else "v_fmac_f32_dpp"
            e(f"{op} v{ACC+i}, v{S}, v{LO+4*w+i} row_newbcast:{w} {DPP}")
        if w < 3: sumstep(w)
    e("s_cmp_eq_u32 s46, 1\ns_cbranch_scc1 L_combine")
    for i in range(4): e(f"v_min_u32 v{ACC+i}, -2, v{ACC+i}")
    e(f"v_min_u32 v{T0}, -2, v{T0}\nv_min_u32 v{T1}, -2, v{T1}")
    e("s_lshl_b32 s58, s3, 10\ns_add_u32 s58, s58, s61\ns_lshl3_add_u32 s59, s3, s61")
    e(f"buffer_store_dwordx4 {vr(ACC)}, v17, s[28:31], s58 offen sc1")
    e(f"s_mov_b64 exec, 1\nbuffer_store_dwordx2 v[{T0}:{T1}], off, s[28:31], s59 offset:2048 sc1")
    e("s_branch L_fin")
    e("L_pidle:\ns_waitcnt lgkmcnt(0)\nv_cmp_ne_u32 vcc, 0, v24\ns_cbranch_vccnz L_mismatch\ns_branch L_fin")

    e("L_combine:")
    e("s_mov_b32 s59, 0x100000")
    F, G, W = 100, 104, 108
    e("L_poll:")
    e("s_waitcnt vmcnt(8)")
    e(f"v_cndmask_b32 v{G}, v{T0}, v{RM}, s[74:75]\nv_cndmask_b32 v{G+1}, v{RM+1}, v{T1}, s[76:77]\ns_nop 0")
    e(f"v_max_f32_dpp v{G+2}, v{G}, v{G} quad_perm:[1,0,3,2] {DPP}\ns_nop 1")
    for k in ("quad_perm:[2,3,0,1]", "row_half_mirror", "row_mirror"):
        e(f"v_max_f32_dpp v{G+2}, v{G+2}, v{G+2} {k} {DPP}" + ("" if k == "row_mirror" else "\ns_nop 1"))
    e(f"v_sub_f32 v{W}, v{G}, v{G+2}\nv_exp_f32 v{W}, v{W}\ns_nop 0\nv_mul_f32 v{G+3}, v{W}, v{G+1}\ns_nop 0")
    steps = ["quad_perm:[1,0,3,2]", "quad_perm:[2,3,0,1]", "row_half_mirror", "row_mirror"]
    for i in range(4): e(f"v_mul_f32_dpp v{F+i}, v{W}, v{ACC+i} row_newbcast:8 {DPP}")
    for j in range(8):
        if j < 4: e(f"v_add_f32_dpp v{G+3}, v{G+3}, v{G+3} {steps[j]} {DPP}")
        if j == 4: e(f"v_rcp_f32 v{G+3}, v{G+3}")
        e(f"s_waitcnt vmcnt({7-j})")
        for i in range(4): e(f"v_fmac_f32_dpp v{F+i}, v{W}, v{R0+4*j+i} row_newbcast:{j} {DPP}")
    for i in range(4): e(f"v_mul_f32 v{F+i}, v{F+i}, v{G+3}")
    e(f"v_cmp_u_f32 vcc, v{F}, v{F+1}\nv_cmp_u_f32 s[78:79], v{F+2}, v{F+3}")
    e(f"v_cvt_pk_bf16_f32 v{G}, v{F}, v{F+1}\nv_cvt_pk_bf16_f32 v{G+1}, v{F+2}, v{F+3}")
    e("s_or_b64 vcc, vcc, s[78:79]\ns_cbranch_scc1 L_check")
    e("L_store:")
    e(f"buffer_store_short v{G}, v13, s[20:23], s73 offen\nbuffer_store_short_d16_hi v{G}, v13, s[20:23], s73 offen offset:16")
    e(f"buffer_store_short v{G+1}, v13, s[20:23], s73 offen offset:32\nbuffer_store_short_d16_hi v{G+1}, v13, s[20:23], s73 offen offset:48")
    e("s_branch L_fin")
    e("; a NaN result: read again while any word still holds the empty mark")
    e("L_check:")
    e(f"v_max_u32 v{W}, v{RM}, v{RM+1}")
    for k in range(16): e(f"v_max3_u32 v{W}, v{W}, v{R0+2*k}, v{R0+2*k+1}")
    e(f"v_cmp_eq_u32 vcc, -1, v{W}\ns_cbranch_vccz L_store")
    e("s_sub_u32 s59, s59, 1\ns_cmp_eq_u32 s59, 0\ns_cbranch_scc1 L_store")
    remote_loads()
    e("s_branch L_poll")

    e("L_shared:")
    e("v_lshrrev_b32 v16, 1, v2\nv_lshlrev_b32 v16, 13, v16\nv_and_b32 v24, 1, v2\nv_lshl_or_b32 v16, v24, 9, v16\nv_lshl_or_b32 v16, v3, 5, v16")
    for i in range(4):
        for c in range(2): e(f"buffer_load_dwordx4 {vr(Q0+16*c+4*i)}, v16, s[12:15], s63 offen offset:{128*i+16*c}")
    vloads(0)
    signal("s", 17)
    vloads(1)
    stamp(2)
    e(f"v_mov_b32 v{NG}, {NEG:#x}\ns_mov_b32 s64, 0x05040100\ns_mov_b32 s65, 0x07060302")
    e("s_waitcnt vmcnt(16)")
    for t in range(2):
        for i in range(4):
            for hb in range(2):
                for c in range(2):
                    d = D0 + 16 * t + 8 * hb + 4 * c
                    e(f"v_mfma_f32_16x16x32_bf16 {vr(d)}, {vr(Kr(t,hb,i))}, {vr(Q0+16*c+4*i)}, {'0' if i == 0 else vr(d)}")
    verify()
    for t in range(2):
        for hb in range(2):
            for u in range(2):
                d = D0 + 16 * t + 8 * hb
                e(f"v_add_f32 v{S+4*t+2*hb+u}, v{d+2*u}, v{d+4+2*u+1}")
    softmax()
    PB = 240
    for a in range(4): e(f"v_cvt_pk_bf16_f32 v{PB+a}, v{S+2*a}, v{S+2*a+1}")
    write_ml()
    e(f"v_mul_u32_u24 v24, {ROWS}, v2\nv_lshl_add_u32 v24, v3, 7, v24\ns_mul_i32 s58, s3, {WAVES}\nv_add_u32 v24, s58, v24")
    def Ar(hf, j): return K0 + 32 * hf + 4 * j
    def Or(hf, j): return (Q0 if hf == 0 else D0) + 4 * j
    def perms(a, hf):
        t, tp = a >> 1, 2 * (a & 1)
        for j in range(8):
            e(f"v_perm_b32 v{Ar(hf,j)+a}, v{Vr(t,tp+1,hf)+j//2}, v{Vr(t,tp,hf)+j//2}, s{64+(j&1)}")
    for a in range(3):
        e(f"s_waitcnt vmcnt({12-4*a})")
        perms(a, 0); perms(a, 1)
    e("s_waitcnt vmcnt(1)")
    perms(3, 0)
    e("s_waitcnt vmcnt(0)")
    for j in range(8):
        t, tp = 1, 2
        e(f"v_perm_b32 v{Ar(1,j)+3}, v{Vr(t,tp+1,1)+j//2}, v{Vr(t,tp,1)+j//2}, s{64+(j&1)}")
        e(f"v_mfma_f32_16x16x32_bf16 {vr(Or(0,j))}, {vr(Ar(0,j))}, {vr(PB)}, 0")
    for j in range(8):
        e(f"v_mfma_f32_16x16x32_bf16 {vr(Or(1,j))}, {vr(Ar(1,j))}, {vr(PB)}, 0")
        e(f"ds_write_b128 v24, {vr(Or(0,j))} offset:{16*j}")
    e(f"v_and_b32 v25, 7, v1\nv_lshlrev_b32 v28, 2, v25\nv_add_u32 v28, {OKF}, v28")
    for j in range(8): e(f"ds_write_b128 v24, {vr(Or(1,j))} offset:{512+16*j}")
    stamp(3)
    e(f"s_lshl_b32 s58, s3, 7\ns_add_u32 s58, s58, {ML}\nv_lshl_add_u32 v29, v2, 3, s58")
    e(f"s_mul_i32 s58, s3, {2*ROWS}\nv_add_u32 v30, s58, v17\nv_add_u32 v31, {4*WAVES}, v30")
    e(f"s_mul_i32 s58, s3, {8*ENT}\ns_add_u32 s58, s58, s61")
    e("s_waitcnt lgkmcnt(0)\ns_barrier")
    stamp(4)
    e(f"ds_read_b32 v24, v28\nds_read_b64 v[{M}:{M+1}], v29")
    def lo(r, w): return 64 + 32 * r + 4 * w
    for w in range(6):
        for r in range(2): e(f"ds_read_b128 {vr(lo(r,w))}, v{30+w//4} offset:{(w%4)*WAVES+r*ROWS}")
    e("s_waitcnt lgkmcnt(12)\nv_cmp_ne_u32 vcc, 0, v24")
    weights8()
    for w in range(8):
        if w < 2:
            for r in range(2): e(f"ds_read_b128 {vr(lo(r,6+w))}, v31 offset:{(2+w)*WAVES+r*ROWS}")
        e(f"s_waitcnt lgkmcnt({12 if w < 2 else 14-2*w})")
        for r in range(2):
            for i in range(4):
                op = "v_mul_f32_dpp" if w == 0 else "v_fmac_f32_dpp"
                e(f"{op} v{ACC+4*r+i}, v{S}, v{lo(r,w)+i} row_newbcast:{8*r+w} {DPP}")
        if w < 3: sumstep(w)
    for i in range(8): e(f"v_min_u32 v{ACC+i}, -2, v{ACC+i}")
    e(f"v_min_u32 v{T0}, -2, v{T0}\nv_min_u32 v{T1}, -2, v{T1}")
    e(f"buffer_store_dwordx4 {vr(ACC)}, v17, s[28:31], s58 offen sc1")
    e(f"buffer_store_dwordx4 {vr(ACC+4)}, v17, s[28:31], s58 offen offset:1024 sc1")
    e(f"s_mov_b64 exec, 0x101\nbuffer_store_dwordx2 v[{T0}:{T1}], v1, s[28:31], s58 offen offset:2048 sc1")
    e("L_fin:")
    if PROF:
        e("s_waitcnt vmcnt(0)")
        stamp(5)
        e("s_mov_b64 exec, 1\ns_getreg_b32 s58, hwreg(HW_REG_XCC_ID)\ns_waitcnt lgkmcnt(0)")
        for n in range(6): e(f"v_mov_b32 v{64+n}, s{80+2*n}")
        e("v_mov_b32 v70, s58\nv_mov_b32 v71, s59")
        e("s_lshl3_add_u32 s58, s2, s3\ns_lshl_b32 s58, s58, 5\ns_add_u32 s58, s58, 0x200000\ns_mov_b32 s30, 0x400000")
        e("buffer_store_dwordx4 v[64:67], off, s[28:31], s58\nbuffer_store_dwordx4 v[68:71], off, s[28:31], s58 offset:16")
    if "hold" in opt:
        e("s_waitcnt vmcnt(0) lgkmcnt(0)")
        e(f"L_hold:\ns_memrealtime s[92:93]\ns_waitcnt lgkmcnt(0)\ns_sub_u32 s92, s92, s94\ns_cmp_lt_u32 s92, {opt['hold']}\ns_cbranch_scc1 L_hold")
    e("L_end:\ns_endpgm")

    e("L_mismatch:")
    e("s_cmp_lg_u32 s46, 1\ns_cbranch_scc1 L_end")
    e("s_waitcnt vmcnt(0) lgkmcnt(0)\ns_barrier")
    e("s_lshl_b32 s58, s45, 2\ns_load_dword s48, s[36:37], s58")
    e("v_bfe_u32 v24, v0, 1, 3\nv_and_b32 v25, 1, v0")
    e("v_lshlrev_b32 v4, 12, v24\nv_lshl_or_b32 v26, v3, 1, v25\nv_lshl_or_b32 v4, v26, 4, v4\nv_add_u32 v5, 0x8000, v4")
    e("v_lshlrev_b32 v28, 1, v3\nv_add_u32 v29, 1, v28\nv_add_u32 v30, 8, v28\nv_add_u32 v31, 9, v28")
    MR, AL = 237, 238
    e(f"v_mov_b32 v{MR}, v{NG}\nv_mov_b32 v{LS}, 0")
    for i in range(8): e(f"v_mov_b32 v{ACC+i}, 0")
    e("s_mov_b32 s47, 0\ns_mov_b32 s72, 0\ns_mov_b32 s74, s3\ns_waitcnt lgkmcnt(0)")
    e("s_min_i32 s48, s48, 0x800\ns_cmp_gt_i32 s48, 0\ns_cselect_b32 s75, s48, 0x800\ns_max_i32 s48, s48, 0")
    e("L_gloop:")
    e("s_lshl_b32 s76, s74, 4\ns_cmp_ge_u32 s76, s75\ns_cbranch_scc1 L_gdone")
    e("s_lshl_b32 s58, s45, 7\ns_add_u32 s58, s58, s74\ns_lshl_b32 s58, s58, 2\ns_load_dword s77, s[16:17], s58")
    e("s_sub_i32 s76, s48, s76")
    for t in range(4): e(f"v_cmp_gt_i32 s[{50+2*t}:{51+2*t}], s76, v{28+t}")
    e("s_waitcnt lgkmcnt(0)\ns_min_u32 s77, s77, 575\ns_lshl_b32 s77, s77, 16\ns_add_u32 s40, s77, s60")
    for hb in range(2):
        for i in range(4):
            e(f"buffer_load_dwordx4 {vr(Kr(1,hb,i))}, v{4+hb}, s[4:7], s40 offen offset:{128*i}")
    for tp in range(4):
        for hf in range(2):
            e(f"buffer_load_dwordx4 {vr(Vr(0,tp,hf))}, v{6+tp}, s[8:11], s40 offen offset:{256*hf}")
    e("s_waitcnt vmcnt(8)")
    qk_private(1, D0)
    e("s_nop 7")
    fold_private(D0, S)
    for t in range(4): e(f"v_cndmask_b32 v{S+t}, v{NG}, v{S+t}, s[{50+2*t}:{51+2*t}]")
    e(f"v_max3_f32 v{M}, v{S}, v{S+1}, v{S+2}\nv_max3_f32 v{M}, v{M}, v{S+3}, v{MR}")
    xg("v_max_f32", M)
    e(f"v_mul_f32 v{T1}, s49, v{M}\nv_mul_f32 v{AL}, s49, v{MR}\nv_sub_f32 v{AL}, v{AL}, v{T1}\nv_exp_f32 v{AL}, v{AL}\nv_mov_b32 v{MR}, v{M}")
    for t in range(4): e(f"v_fma_f32 v{S+t}, v{S+t}, s49, -v{T1}")
    for t in range(4): e(f"v_exp_f32 v{S+t}, v{S+t}")
    e(f"v_mul_f32 v{LS}, v{LS}, v{AL}")
    for t in range(4): e(f"v_add_f32 v{LS}, v{LS}, v{S+t}")
    for i in range(8): e(f"v_mul_f32 v{ACC+i}, v{ACC+i}, v{AL}")
    pz(4)
    e("s_waitcnt vmcnt(0)\ns_nop 0")
    for tp in range(4):
        for hf in range(2):
            e(f"v_mfma_f32_16x16x32_bf16 {vr(ACC+4*hf)}, {vr(Vr(0,tp,hf))}, {vr(PZ+4*tp)}, {vr(ACC+4*hf)}")
    e("s_add_u32 s74, s74, 8\ns_branch L_gloop")
    e("L_gdone:")
    xg("v_add_f32", LS)
    e(f"v_mul_f32 v{M}, s49, v{MR}")
    write_ml()
    e("s_branch L_pwrite")

    e(".p2align 7\n.type plan_table,@object\nplan_table:")
    for role, b, j, tiles in plan:
        assert 8 <= len(tiles) <= 16
        for w in range(8):
            t0 = tiles[w]; assert t0[1] == 16
            t1 = tiles[8 + w] if 8 + w < len(tiles) else (0, 0)
            e(f".long {t0[0]*65536:#x}, {t1[0]*65536:#x}, {t1[1]}, {b | role << 4 | j << 8:#x}")
    e(".size plan_table, 4096")
    e(f'.section .rodata,"a"\n.p2align 6\n.amdhsa_kernel {KNAME}')
    e(".amdhsa_next_free_vgpr 256\n.amdhsa_next_free_sgpr 102\n.amdhsa_accum_offset 256")
    e(".amdhsa_group_segment_fixed_size 0\n.amdhsa_kernarg_size 64\n.amdhsa_user_sgpr_count 2")
    e(".amdhsa_user_sgpr_kernarg_segment_ptr 1\n.amdhsa_system_sgpr_workgroup_id_x 1")
    e(".amdhsa_float_denorm_mode_32 3\n.end_amdhsa_kernel")
    text = "\n".join(L) + "\n"
    bad = check(text)
    for b in bad: print("HAZARD need %d have %d: %s -> %s" % b, file=sys.stderr)
    assert not bad
    return text

if __name__ == "__main__":
    import json
    opt = json.loads(sys.argv[2]) if len(sys.argv) > 2 else {}
    open(sys.argv[1], "w").write(gen(opt))
    for w in make_plan(opt): print(w[0], w[1], w[2], len(w[3]), w[3][0], w[3][-1])
```

```python
import sys
from hazard import check

KNAME = "standalone__paged_block_table_kv_radixattention__sampling_kernel"
KV_BYTES = 576 * 65536
ENT = 2048
NE = 70
HEAD = 4096 + NE * ENT
INBOX_BYTES = 8 * HEAD
EPOCH = INBOX_BYTES
FAR = INBOX_BYTES + 256
ROWS, WAVES = 1040, 16640
ML = 8 * WAVES
OKF = ML + 1024
QL = OKF + 512
LDS = QL + 8192
CTX = [2048 - ((b + 1) * 2654435761) % 512 for b in range(8)]
NEG = 0xF1800000
SCALE = 0x3DB8AA3B
DPP = "row_mask:0xf bank_mask:0xf"
PROD, CONS, SHARED = 0, 1, 2

def spread(n, k, front=0):
    s = [n // k + (1 if x < n % k else 0) for x in range(k)]
    assert min(s) >= 16 and max(s) <= 32, (n, k)
    return s

def make_plan(opt):
    nsh = opt.get("nsh", 5)
    bias = opt.get("bias", 0)
    chains = opt.get("chains", [[[7, 4], 7], [[5, 6], 7], [[0, 2, 1, 3], 13]])
    wgs = []
    cuts = [round(1024 * x / nsh) for x in range(nsh + 1)]
    for s in range(nsh): wgs.append([SHARED, [[0, cuts[s], cuts[s + 1] - cuts[s], s]]])
    for batches, k in chains:
        lens = [CTX[b] - 1024 for b in batches]
        base = (sum(lens) - bias * len(batches)) / k
        cons = round(base + bias)
        rest = [x - cons for x in lens]
        kp = k - len(batches)
        edges = [round(sum(rest) * x / kp) for x in range(kp + 1)]
        acc = 0
        for x in rest[:-1]:
            acc += x
            for y in range(1, kp):
                if abs(edges[y] - acc) < 8: edges[y] = acc
                elif 0 < edges[y] - acc < 16: edges[y] = acc + 16
                elif 0 < acc - edges[y] < 16: edges[y] = acc - 16
        count = {b: nsh for b in batches}
        prods = []
        for y in range(kp):
            pieces, acc = [], 0
            for b, x in zip(batches, rest):
                lo, hi = max(edges[y], acc), min(edges[y + 1], acc + x)
                if hi > lo:
                    pieces.append([b, 1024 + 1024 * b + cons + lo - acc, hi - lo, count[b]]); count[b] += 1
                acc += x
            assert 1 <= len(pieces) <= 2
            prods.append([PROD, pieces])
        for b in batches: wgs.append([CONS, [[b, 1024 + 1024 * b, cons, count[b]]]])
        wgs += prods
    assert len(wgs) == 32
    if opt.get("sort", 1): wgs.sort(key=lambda w: min(p[1] for p in w[1]))
    order = opt.get("order")
    if order: wgs = [wgs[x] for x in order]
    return wgs

def entry_bases(plan):
    cnt = {w[1][0][0]: w[1][0][3] for w in plan if w[0] == CONS}
    base = [sum(cnt[x] for x in range(b)) for b in range(9)]
    assert base[8] <= NE
    return base

def wave_rows(role, pieces, base):
    if len(pieces) == 1: split = [8]
    else:
        a, b = pieces[0][2], pieces[1][2]
        ok = [x for x in range(1, 8) if 16 * x <= a <= 32 * x and 16 * (8 - x) <= b <= 32 * (8 - x)]
        x = min(ok, key=lambda x: max(a / x, b / (8 - x)))
        split = [x, 8 - x]
    if len(pieces) == 1: members = [list(range(8))]
    else: members = [[0] + list(range(2, 1 + split[0])), [1] + list(range(1 + split[0], 8))]
    waves = [None] * 8
    for (b, t, n, j), ws in zip(pieces, members):
        for w, x in zip(ws, spread(n, len(ws))):
            waves[w] = (b, t, x); t += x
    rows = []
    for w, (b, t, x) in enumerate(waves):
        qs = w if role == SHARED else pieces[w][0] if w < len(pieces) else 15
        g = w >> 1
        if role == SHARED: tb, j, mask, act = w, pieces[0][3], 255, 1
        elif role == CONS: tb, j, mask, act = b, pieces[0][3], 255, 1
        elif g < len(pieces): tb, j, mask, act = pieces[g][0], pieces[g][3], sum(1 << y for y in members[g]), 1
        else: tb, j, mask, act = b, 0, 255, 0
        rows.append((t * 4096, x - 16, b | role << 4 | qs << 8,
                     tb | j << 4 | mask << 8 | act << 16 | (base[tb] + (0 if role == CONS else j)) << 20))
    return rows

def wg_map(opt):
    return {"div": lambda wg: (wg >> 5, wg & 31), "mod": lambda wg: (wg & 7, wg >> 3),
            "par": lambda wg: ((wg & 1) | (wg >> 6) << 1, (wg >> 1) & 31)}[opt.get("map", "mod")]

def gen(opt=None):
    opt = opt or {}
    NT = opt.get("nt", "nt")
    PROF = opt.get("prof", False)
    WARM = opt.get("warm", 1)
    DUAL = opt.get("dual", 64)
    KF = opt.get("kfirst", 1)
    def put(op, data, addr, so, off):
        a = "off" if addr is None else addr
        en = "" if addr is None else "offen "
        if DUAL:
            e(f"{op} {data}, {a}, s[28:31], {so} {en}offset:{off}")
            far.append(f"s_add_u32 s58, {so}, {FAR}\n{op} {data}, {a}, s[28:31], s58 {en}offset:{off} sc1")
        else: e(f"{op} {data}, {a}, s[28:31], {so} {en}offset:{off} sc1")
    far = []
    def flush_far():
        while far: e(far.pop(0))
    L = []
    def e(s):
        for x in s.split("\n"):
            x = x.strip()
            if x: L.append(x if x.endswith(":") or x.startswith(".") or x.startswith(";") else "    " + x)
    plan = make_plan(opt)
    K0, V0, Q0, D0 = 64, 128, 32, 192
    S = 224
    M, LS, T0, T1, T2, MR, AL, PB, NG, TG = 232, 233, 234, 235, 236, 237, 238, 240, 244, 245
    ACC, PZ = 208, K0
    def vr(a, n=4): return f"v[{a}:{a+n-1}]"
    def Kr(t, hb, i): return K0 + t * 32 + hb * 16 + i * 4
    def Vr(t, tp, hf): return V0 + t * 32 + tp * 8 + hf * 4
    def stamp(n):
        if PROF: e(f"s_memrealtime s[{80+2*n}:{81+2*n}]")

    e(f"; @launch grid=(256,1,1) block=(512,1,1) lds={LDS}")
    e('.amdgcn_target "amdgcn-amd-amdhsa--gfx950"\n.text')
    e(f".globl {KNAME}\n.p2align 8\n.type {KNAME},@function\n{KNAME}:")
    stamp(0)
    e("s_cmp_ge_u32 s2, 0x100\ns_cbranch_scc1 L_end")
    e("s_load_dwordx2 s[4:5], s[0:1], 8\ns_load_dwordx2 s[8:9], s[0:1], 16")
    e("v_readfirstlane_b32 s3, v0\ns_getpc_b64 s[38:39]\nL_pc:")
    mp = opt.get("map", "mod")
    if mp == "div": e("s_and_b32 s58, s2, 31\ns_lshr_b32 s44, s2, 5")
    elif mp == "mod": e("s_lshr_b32 s58, s2, 3\ns_and_b32 s44, s2, 7")
    else: e("s_bfe_u32 s58, s2, 0x50001")
    e("s_lshl_b32 s58, s58, 7\ns_lshr_b32 s59, s3, 2\ns_add_u32 s58, s58, s59\ns_add_u32 s58, s58, plan_table-L_pc")
    e("s_load_dwordx4 s[40:43], s[38:39], s58")
    e("s_load_dwordx2 s[12:13], s[0:1], 0\ns_load_dwordx2 s[16:17], s[0:1], 24\ns_load_dwordx2 s[36:37], s[0:1], 32")
    e("s_load_dwordx2 s[20:21], s[0:1], 40\ns_load_dwordx2 s[28:29], s[0:1], 56")
    if mp == "par": e("s_lshr_b32 s44, s2, 6\ns_and_b32 s59, s2, 1\ns_lshl1_add_u32 s44, s44, s59")
    e("v_and_b32 v1, 63, v0\nv_and_b32 v2, 15, v0\nv_bfe_u32 v3, v0, 4, 2")
    e("v_bfe_u32 v24, v0, 1, 3\nv_and_b32 v25, 1, v0")
    e("v_lshlrev_b32 v4, 12, v24\nv_lshl_or_b32 v26, v3, 1, v25\nv_lshl_or_b32 v4, v26, 4, v4\nv_add_u32 v5, 0x8000, v4")
    e(f"s_mov_b32 s6, {KV_BYTES}\ns_mov_b32 s7, 0x20000\ns_mov_b32 s10, {KV_BYTES}\ns_mov_b32 s11, 0x20000")
    e("s_lshl_b32 s60, s44, 9\ns_lshr_b32 s3, s3, 6")
    e("s_mov_b32 s14, 0x10000\ns_mov_b32 s15, 0x20000\ns_lshl_b32 s63, s44, 10")
    e("v_lshrrev_b32 v27, 5, v1\nv_xor_b32 v16, v27, v1\nv_lshlrev_b32 v16, 4, v16")
    e("v_bfrev_b32 v27, 1\nv_add_u32 v28, 8, v24\nv_lshlrev_b32 v6, 13, v3\nv_lshl_or_b32 v6, v2, 4, v6")
    e("s_waitcnt lgkmcnt(0)")
    stamp(1)
    e("s_bfe_u32 s58, s42, 0x40008\ns_add_u32 s40, s40, s60\ns_cmp_ge_u32 s58, 8\ns_cbranch_scc1 L_noq")
    e(f"s_lshl_b32 s59, s58, 10\ns_add_u32 m0, s59, {QL}\ns_lshl_b32 s59, s58, 5\nv_xor_b32 v16, s59, v16\ns_lshl_b32 s58, s58, 13\ns_add_u32 s58, s58, s63")
    e("buffer_load_dwordx4 v16, s[12:15], s58 offen lds")
    e("L_noq:")
    for hb in range(2):
        for i in range(4):
            e(f"buffer_load_dwordx4 {vr(Kr(0,hb,i))}, v{4+hb}, s[4:7], s40 offen offset:{128*i} {NT}")
    if not KF: e("s_waitcnt vmcnt(8)\ns_barrier")
    e("v_cmp_gt_u32 vcc, s41, v24\nv_cmp_gt_u32 s[58:59], s41, v28")
    e("s_add_u32 s62, s40, 0x10000\ns_lshl_b32 s79, s3, 2\ns_load_dword s48, s[36:37], s79")
    e("v_cndmask_b32 v10, v27, v4, vcc\nv_cndmask_b32 v11, v27, v5, s[58:59]")
    for hb in range(2):
        for i in range(4):
            e(f"buffer_load_dwordx4 {vr(Kr(1,hb,i))}, v{10+hb}, s[4:7], s62 offen offset:{128*i} {NT}")
    e("v_add_u32 v7, 0x1000, v6\nv_add_u32 v8, 0x8000, v6\nv_add_u32 v9, 0x9000, v6")
    e("v_lshlrev_b32 v28, 1, v3\nv_add_u32 v29, 1, v28\nv_add_u32 v30, 8, v28\nv_add_u32 v31, 9, v28")
    for t in range(4): e(f"v_cmp_gt_u32 s[{50+2*t}:{51+2*t}], s41, v{28+t}")
    e("s_and_b32 s45, s42, 15\ns_bfe_u32 s46, s42, 0x20004\ns_bfe_u32 s47, s43, 0x40004")
    for t in range(4): e(f"v_cndmask_b32 v{12+t}, v27, v{6+t}, s[{50+2*t}:{51+2*t}]")
    e("s_mov_b32 s18, 0x1000\ns_mov_b32 s19, 0x20000\ns_mov_b32 s22, 0x10000\ns_mov_b32 s23, 0x20000")
    e(f"s_mov_b32 s30, {FAR+INBOX_BYTES}\ns_mov_b32 s31, 0x20000\ns_mov_b32 s49, {SCALE:#x}")
    e(f"s_and_b32 s77, s43, 15\ns_lshl3_add_u32 s24, s44, s77\ns_lshl_b32 s24, s24, 2\ns_add_u32 s24, s24, {EPOCH}")
    e("s_load_dword s25, s[28:29], s24")
    e(f"s_mul_i32 s32, s44, {HEAD}\ns_lshr_b32 s58, s43, 20\ns_add_u32 s58, s58, 2\ns_lshl_b32 s58, s58, 11\ns_add_u32 s61, s32, s58")
    e("s_lshl_b32 s77, s77, 9\ns_add_u32 s33, s32, s77")
    e("v_lshlrev_b32 v17, 4, v1\nv_lshlrev_b32 v24, 3, v1\ns_lshl_b32 s58, s3, 9")
    e("buffer_load_dwordx2 v[18:19], v24, s[16:19], s58 offen")
    for x in range(48, 54): e(f"v_mov_b32 v{x}, 0")
    if opt.get("prio", 1): e("s_cmp_ge_u32 s3, 4\ns_cbranch_scc1 L_lowprio\ns_setprio 1\nL_lowprio:")
    if KF: e("s_waitcnt vmcnt(17)\ns_barrier")
    QF = opt.get("qkfirst", 1)
    if QF:
        e("; waves 0-3 request V now; waves 4-7 compute their probabilities first")
        e("s_cmp_ge_u32 s3, 4\ns_cbranch_scc1 L_klate\nL_vload:")
    for t in range(2):
        for tp in range(4):
            for hf in range(2):
                e(f"buffer_load_dwordx4 {vr(Vr(t,tp,hf))}, v{(6 if t == 0 else 12)+tp}, s[8:11], {'s40' if t == 0 else 's62'} offen offset:{256*hf} {NT}")
    stamp(2)
    if QF:
        e("s_cmp_lt_u32 s3, 4\ns_cbranch_scc1 L_kearly\ns_cmp_eq_u32 s46, 2\ns_cbranch_scc1 L_sx\ns_branch L_px")
        e("L_klate:\ns_waitcnt vmcnt(0)\nL_kearly:")
    e("s_cmp_eq_u32 s46, 2\ns_cbranch_scc1 L_shared")

    def verify():
        e("; compare this wave's row of the block table and its context length with the planned ones")
        e("s_lshl_b32 s58, s3, 6\nv_lshrrev_b32 v24, 5, v1\nv_lshlrev_b32 v25, 1, v1")
        e("v_mad_u32_u24 v24, v24, s58, v25\nv_add_u32 v25, 1, v24")
        e("v_cmp_ne_u32 vcc, v24, v18\nv_cmp_ne_u32 s[58:59], v25, v19")
        e("s_add_u32 s72, s3, 1\ns_mul_i32 s72, s72, 433\ns_and_b32 s72, s72, 511\ns_sub_u32 s72, 0x800, s72")
        e("s_or_b64 vcc, vcc, s[58:59]\ns_or_b32 s58, vcc_lo, vcc_hi")
        e("s_xor_b32 s72, s72, s48\ns_or_b32 s72, s72, s58")
        if "force" in opt: e(f"s_mov_b32 s72, {opt['force']}")
        e(f"s_add_u32 s25, s25, 1\ns_and_b32 s26, s25, 0xff\nv_mov_b32 v{TG}, s26\ns_mov_b32 s27, 0xffffff00")
    def xg(op, r):
        e(f"v_mov_b32 v{T0}, v{r}\ns_nop 1\nv_permlane16_swap_b32 v{r}, v{T0}\n{op} v{r}, v{r}, v{T0}")
        e(f"v_mov_b32 v{T0}, v{r}\ns_nop 1\nv_permlane32_swap_b32 v{r}, v{T0}\n{op} v{r}, v{r}, v{T0}")
    def softmax():
        for t in range(4): e(f"v_cndmask_b32 v{S+4+t}, v{NG}, v{S+4+t}, s[{50+2*t}:{51+2*t}]")
        e(f"v_max3_f32 v{M}, v{S}, v{S+1}, v{S+2}\nv_max3_f32 v{T1}, v{S+3}, v{S+4}, v{S+5}")
        e(f"v_max3_f32 v{M}, v{M}, v{S+6}, v{S+7}\nv_max_f32 v{M}, v{M}, v{T1}")
        xg("v_max_f32", M)
        e(f"v_mul_f32 v{M}, s49, v{M}")
        for t in range(8): e(f"v_fma_f32 v{S+t}, v{S+t}, s49, -v{M}")
        for t in range(8): e(f"v_exp_f32 v{S+t}, v{S+t}")
        e(f"v_add_f32 v{LS}, v{S}, v{S+1}\nv_add_f32 v{T1}, v{S+2}, v{S+3}\nv_add_f32 v{LS}, v{LS}, v{S+4}\nv_add_f32 v{T1}, v{T1}, v{S+5}")
        e(f"v_add_f32 v{LS}, v{LS}, v{S+6}\nv_add_f32 v{T1}, v{T1}, v{S+7}\nv_add_f32 v{LS}, v{LS}, v{T1}")
        xg("v_add_f32", LS)
    def write_ml():
        e(f"v_lshlrev_b32 v24, 6, v2\ns_lshl_b32 s58, s3, 3\ns_add_u32 s58, s58, {ML}\nv_add_u32 v24, s58, v24")
        e(f"s_lshl_b32 s58, s3, 2\ns_add_u32 s58, s58, {OKF}\nv_mov_b32 v25, s58\nv_mov_b32 v26, s72")
        e(f"ds_write_b64 v24, v[{M}:{M+1}]\nds_write_b32 v25, v26")
    def qk_private(t, Dbase):
        for i in range(4):
            for hb in range(2):
                d = Dbase + 4 * hb
                e(f"v_mfma_f32_16x16x32_bf16 {vr(d)}, {vr(Kr(t,hb,i))}, {vr(Q0+4*i)}, {'0' if i == 0 else vr(d)}")
    def fold_private(Dbase, Sbase):
        for hb in range(2):
            for u in range(2):
                d = Dbase + 4 * hb + 2 * u
                e(f"v_mov_b32_dpp v{T1}, v{d} quad_perm:[0,0,2,2] {DPP}")
                e(f"v_add_f32_dpp v{Sbase+2*hb+u}, v{d+1}, v{T1} quad_perm:[1,1,3,3] {DPP}")
    def pz(n):
        for t in range(n): e(f"v_cvt_pk_bf16_f32 v{S+t}, v{S+t}, v{S+t}")
        for t in range(n):
            for r in range(4): e(f"v_and_b32 v{PZ+4*t+r}, v{S+t}, v{20+r}")
    STEP = ["quad_perm:[1,0,3,2]", "quad_perm:[2,3,0,1]", "row_half_mirror", "row_mirror"]
    def weights8(masked=False):
        e(f"v_max_f32_dpp v{T0}, v{M}, v{M} {STEP[0]} {DPP}\ns_cbranch_vccnz L_mismatch\ns_nop 0")
        e(f"v_max_f32_dpp v{T0}, v{T0}, v{T0} {STEP[1]} {DPP}\ns_nop 1")
        e(f"v_max_f32_dpp v{T0}, v{T0}, v{T0} {STEP[2]} {DPP}")
        e(f"v_sub_f32 v{S}, v{M}, v{T0}\nv_exp_f32 v{S}, v{S}\ns_nop 0")
        if masked: e(f"v_cndmask_b32 v{S}, 0, v{S}, s[74:75]")
        e(f"v_mul_f32 v{T1}, v{S}, v{LS}")
    def sumstep(k): e(f"v_add_f32_dpp v{T1}, v{T1}, v{T1} {STEP[k]} {DPP}")
    def tag(r): e(f"v_and_or_b32 v{r}, v{r}, s27, v{TG}")
    def tag_ml():
        e(f"v_lshl_or_b32 v{T2}, v{T0}, 8, v{TG}"); tag(T0); tag(T1)

    def warm(t):
        if not WARM: return
        nl = -(-(entry_bases(plan)[8] * 16 + 32) // 32)
        e(f"s_cmp_lg_u32 s3, 3\ns_cbranch_scc1 L_nowarm{t}")
        e({"div": "s_and_b32 s58, s2, 31", "mod": "s_lshr_b32 s58, s2, 3", "par": "s_bfe_u32 s58, s2, 0x50001"}[mp])
        e(f"s_mul_i32 s58, s58, {nl*128}\ns_add_u32 s58, s58, s32\nv_lshlrev_b32 v24, 7, v1\ns_bfm_b64 exec, {nl}, 0")
        e("buffer_load_dword v239, v24, s[28:31], s58 offen sc1")
        if WARM > 1: e("s_mov_b64 exec, 1\nbuffer_load_dword v239, off, s[20:23], s63")
        e(f"s_mov_b64 exec, -1\nL_nowarm{t}:")

    e("s_lshl_b32 s58, s45, 13\ns_add_u32 s63, s63, s58\ns_lshl_b32 s58, s45, 1")
    e("v_lshrrev_b32 v16, 3, v2\nv_add_u32 v16, s58, v16\nv_xor_b32 v24, v16, v26\nv_lshlrev_b32 v24, 4, v24")
    e(f"v_lshl_add_u32 v16, v16, 9, v24\nv_add_u32 v16, {QL}, v16\nv_xor_b32 v24, 0x80, v16")
    for i in range(4): e(f"ds_read_b128 {vr(Q0+4*i)}, v{24 if i & 1 else 16} offset:{256*(i>>1)}")
    e(f"v_mov_b32 v{NG}, {NEG:#x}\nv_and_b32 v24, 1, v1\nv_lshlrev_b32 v24, 4, v24\nv_mov_b32 v25, 0xffff\nv_lshlrev_b32 v25, v24, v25")
    e("v_bfe_u32 v24, v1, 1, 2")
    for r in range(4): e(f"v_cmp_eq_u32 s[{64+2*r}:{65+2*r}], {r}, v24")
    e("s_nop 0")
    for r in range(4): e(f"v_cndmask_b32 v{20+r}, 0, v25, s[{64+2*r}:{65+2*r}]")
    e("s_waitcnt vmcnt(16) lgkmcnt(0)")
    qk_private(0, D0); qk_private(1, D0 + 8)
    verify()
    fold_private(D0, S); fold_private(D0 + 8, S + 4)
    softmax()
    pz(8)
    e("L_ptail:")
    write_ml()
    A0, RM, RA, LO = 48, 246, 216, 96
    e(f"v_lshrrev_b32 v24, 3, v2\nv_mul_u32_u24 v24, {ROWS}, v24\nv_and_b32 v25, 7, v1\nv_lshl_or_b32 v26, v3, 3, v25")
    e(f"s_mul_i32 s58, s3, {WAVES}\nv_lshl_add_u32 v24, v26, 4, v24\nv_add_u32 v16, s58, v24")
    e(f"v_lshlrev_b32 v28, 2, v25\nv_add_u32 v28, {OKF}, v28\ns_and_b32 s78, s3, 1")
    e("s_lshl_b32 s76, s78, 10\ns_add_u32 s76, s76, s61\ns_lshl_b32 s77, s78, 8\ns_add_u32 s77, s77, s33")
    e("s_cmp_eq_u32 s46, 1\ns_cbranch_scc1 L_cprep")
    e("s_bfe_u32 s64, s43, 0x80008\ns_lshr_b32 s65, s3, 1\nv_lshrrev_b32 v24, v25, s64\nv_and_b32 v24, 1, v24\nv_cmp_eq_u32 s[74:75], 1, v24")
    e(f"v_mov_b32 v26, s65\ns_mul_i32 s59, s78, {ROWS}\ns_lshl4_add_u32 s77, s47, s77\nv_cndmask_b32 v25, v26, v25, s[74:75]")
    for w in range(8):
        e(f"s_bitcmp1_b32 s64, {w}\ns_cselect_b32 s58, {w}, s65\ns_mul_i32 s58, s58, {WAVES}\ns_add_u32 s58, s58, s59\nv_add_u32 v{A0+w}, s58, v17")
    e("s_branch L_prepped")
    e("L_cprep:")
    e("; combining wave: row s78, words 64 * (wave >> 1) + lane of each partial row")
    e("s_lshr_b32 s58, s3, 1\ns_lshl_b32 s59, s58, 8\nv_lshl_add_u32 v24, v1, 2, s59")
    e("v_and_b32 v10, 32, v1\nv_and_b32 v26, 3, v1\nv_lshl_or_b32 v10, v26, 3, v10\nv_bfe_u32 v26, v1, 2, 3\nv_or_b32 v10, v10, v26\nv_lshlrev_b32 v10, 1, v10")
    e(f"s_mul_i32 s59, s78, {ROWS}\nv_add_u32 v30, s59, v24\nv_add_u32 v31, {4*WAVES}, v30")
    e(f"v_mov_b32 v{A0}, v24")
    for x in range(1, 5): e(f"v_add_u32 v{A0+x}, {2*x*ENT}, v24")
    e(f"v_lshlrev_b32 v{A0+5}, 4, v2\nv_cmp_gt_u32 s[74:75], s47, v2\nv_cmp_eq_u32 s[66:67], 15, v2")
    e("s_lshl_b32 s58, s58, 7\ns_lshl_b32 s59, s78, 9\ns_add_u32 s73, s63, s58\ns_add_u32 s73, s73, s59")
    e("L_prepped:")
    e(f"s_lshl_b32 s58, s78, 9\ns_add_u32 s58, s58, {ML}\nv_lshl_add_u32 v29, v25, 3, s58")
    e("; waves 0-3 finish first: P*V, first barrier, partial reduction; waves 4-7 pass the first barrier before their P*V")
    if QF: e("s_cmp_lt_u32 s3, 4\ns_cbranch_scc1 L_py\ns_cmp_lg_u32 s41, -1\ns_cbranch_scc1 L_vload\ns_branch L_px")
    else: e("s_cmp_ge_u32 s3, 4\ns_cbranch_scc1 L_px")
    e("L_py:")
    e("s_cmp_eq_u32 s41, -1\ns_cbranch_scc1 L_pwrite")
    for t in range(2):
        for tp in range(4):
            e(f"s_waitcnt vmcnt({14 - 8*t - 2*tp})")
            for hf in range(2):
                first = t == 0 and tp == 0
                e(f"v_mfma_f32_16x16x32_bf16 {vr(ACC+4*hf)}, {vr(Vr(t,tp,hf))}, {vr(PZ+16*t+4*tp)}, {'0' if first else vr(ACC+4*hf)}")
    e("s_nop 6")
    e("L_pwrite:")
    e(f"ds_write_b128 v16, {vr(ACC)}\nds_write_b128 v16, {vr(ACC+4)} offset:512")
    stamp(3)
    e("s_cmp_ge_u32 s3, 4\ns_cbranch_scc1 L_pb")
    warm("p")
    e("L_px:")
    e("s_waitcnt lgkmcnt(0)\ns_barrier")
    e("s_cmp_eq_u32 s46, 1\ns_cbranch_scc1 L_cpre")
    e("s_bitcmp0_b32 s43, 16\ns_cbranch_scc1 L_pxe")
    e(f"ds_read_b32 v24, v28\nds_read_b64 v[{M}:{M+1}], v29")
    for w in range(4): e(f"ds_read_b128 {vr(LO+4*w)}, v{A0+w}")
    e("s_waitcnt lgkmcnt(4)\nv_cmp_ne_u32 vcc, 0, v24")
    weights8(True)
    def acc4(w):
        for i in range(4):
            e(f"{'v_mul_f32_dpp' if w == 0 else 'v_fmac_f32_dpp'} v{RA+i}, v{S}, v{LO+4*(w&3)+i} row_newbcast:{w} {DPP}")
    for w in range(4):
        e(f"s_waitcnt lgkmcnt({3-w})")
        acc4(w)
        if w < 3: sumstep(w)
    tag_ml()
    e("s_mov_b64 exec, 1")
    put("buffer_store_dwordx3", f"v[{T0}:{T2}]", None, "s77", 0)
    flush_far()
    e("s_mov_b64 exec, -1")
    e("s_barrier")
    stamp(4)
    for w in range(4, 8): e(f"ds_read_b128 {vr(LO+4*(w&3))}, v{A0+w}")
    for w in range(4, 8):
        e(f"s_waitcnt lgkmcnt({7-w})")
        acc4(w)
    for i in range(4): tag(RA + i)
    stamp(2)
    put("buffer_store_dwordx4", vr(RA), "v17", "s76", 0)
    flush_far()
    e("s_branch L_fin")
    R0, F, G, W, CK = 112, 100, 104, 108, 109
    cnts = [w[1][0][3] for w in plan if w[0] == CONS]
    mincnt, maxcnt = min(cnts), max(cnts)
    assert maxcnt <= 10
    e("L_cpre:")
    e(f"ds_read_b32 v24, v28\nds_read_b64 v[{M}:{M+1}], v29")
    for x in range(2): e(f"ds_read2st64_b32 v[{LO+2*x}:{LO+2*x+1}], v30 offset0:{130*x} offset1:{130*x+65}")
    for j in range(maxcnt): e(f"v_mov_b32 v{R0+j}, v{TG}")
    e("s_mov_b32 s59, 0x100000\ns_mov_b32 s68, 0x07060501")
    e("s_waitcnt lgkmcnt(2)\nv_cmp_ne_u32 vcc, 0, v24")
    weights8()
    e("s_waitcnt lgkmcnt(0)")
    for w in range(4):
        e(f"{'v_mul_f32_dpp' if w == 0 else 'v_fmac_f32_dpp'} v{RA}, v{S}, v{LO+w} row_newbcast:{w} {DPP}")
        if w < 3:
            sumstep(w); e("s_nop 0")
    e(f"v_cndmask_b32 v{T1}, 0, v{T1}, s[66:67]")
    e("L_pxe:")
    e("s_cmp_ge_u32 s3, 4\ns_cbranch_scc1 L_py")
    e("L_pb:")
    e("s_waitcnt lgkmcnt(0)\ns_barrier")
    stamp(4)
    e("s_cmp_lg_u32 s46, 1\ns_cbranch_scc1 L_fin")

    def row_loads(lab):
        for j in range(maxcnt):
            if j == 0 or j >= mincnt: e(f"s_cmp_le_u32 s47, {j}\ns_cbranch_scc1 {lab}")
            e(f"buffer_load_dword v{R0+j}, v{A0+j//2}, s[28:31], s76 offen offset:{ENT*(j&1)} sc1")
    def miss(t, out):
        e(f"s_sub_u32 s59, s59, 1\ns_cmp_le_u32 s59, 1\ns_cbranch_scc1 {out}")
        if DUAL: e(f"s_cmp_lg_u32 s59, {0x100000 - DUAL}\ns_cbranch_scc1 L_near{t}\ns_add_u32 s76, s76, {FAR}\ns_add_u32 s77, s77, {FAR}\nL_near{t}:")
    ml_load = f"buffer_load_dwordx3 v[{RM}:{RM+2}], v{A0+5}, s[28:31], s77 offen sc1"
    for x in range(2): e(f"ds_read2st64_b32 v[{LO+2*x}:{LO+2*x+1}], v31 offset0:{130*x} offset1:{130*x+65}")
    e(ml_load)
    row_loads("L_cissued")
    e("L_cissued:")
    e("s_waitcnt lgkmcnt(0)")
    for w in range(4, 8): e(f"v_fmac_f32_dpp v{RA}, v{S}, v{LO+w-4} row_newbcast:{w} {DPP}")
    e("L_pollml:")
    e("s_waitcnt vmcnt(0)")
    if PROF: e("s_cmp_lg_u32 s59, 0x100000\ns_cbranch_scc1 L_nost\ns_memrealtime s[84:85]\nL_nost:")
    e(f"v_perm_b32 v{G}, v{RM}, v{RM+2}, s68\nv_bitop3_b32 v{CK}, v{RM}, v{RM+1}, v{TG} bitop3:0x7e")
    e(f"v_cndmask_b32 v{G}, v{T0}, v{G}, s[74:75]\nv_cndmask_b32 v{G+1}, v{T1}, v{RM+1}, s[74:75]")
    e(f"v_bitop3_b32 v{CK}, v{CK}, v{RM+2}, v{TG} bitop3:0xf6")
    e(f"v_max_f32_dpp v{G+2}, v{G}, v{G} {STEP[0]} {DPP}\nv_and_b32 v{CK}, 0xff, v{CK}\nv_cmp_ne_u32 vcc, 0, v{CK}")
    e(f"v_max_f32_dpp v{G+2}, v{G+2}, v{G+2} {STEP[1]} {DPP}\ns_and_b64 vcc, vcc, s[74:75]\ns_cbranch_scc1 L_againml")
    e("L_gotml:")
    e(f"v_max_f32_dpp v{G+2}, v{G+2}, v{G+2} {STEP[2]} {DPP}\ns_nop 1\nv_max_f32_dpp v{G+2}, v{G+2}, v{G+2} {STEP[3]} {DPP}")
    e(f"v_sub_f32 v{W}, v{G}, v{G+2}\nv_exp_f32 v{W}, v{W}\ns_nop 0\nv_mul_f32 v{G+3}, v{W}, v{G+1}\ns_nop 0")
    e(f"v_mul_f32_dpp v{RA}, v{W}, v{RA} row_newbcast:15 {DPP}")
    for k in range(4): e(f"v_add_f32_dpp v{G+3}, v{G+3}, v{G+3} {STEP[k]} {DPP}" + ("\ns_nop 1" if k < 3 else ""))
    e(f"v_rcp_f32 v{G+3}, v{G+3}")
    e("L_poll:")
    e("s_waitcnt vmcnt(0)")
    chk = []
    for j in range(0, maxcnt - 3, 4):
        chk += [f"v_bitop3_b32 v{CK+1}, v{R0+j}, v{R0+j+1}, v{TG} bitop3:0x7e", f"v_bitop3_b32 v{CK+2}, v{R0+j+2}, v{R0+j+3}, v{TG} bitop3:0x7e",
                f"v_or3_b32 v{CK}, v{CK}, v{CK+1}, v{CK+2}" if j else f"v_or_b32 v{CK}, v{CK+1}, v{CK+2}"]
    for j in range(maxcnt // 4 * 4, maxcnt): chk.append(f"v_bitop3_b32 v{CK}, v{CK}, v{R0+j}, v{TG} bitop3:0xf6")
    chk += [f"v_and_b32 v{CK}, 0xff, v{CK}", f"v_cmp_ne_u32 vcc, 0, v{CK}"]
    for x in chk: e(x)
    e(f"v_mul_f32_dpp v{F}, v{W}, v{R0} row_newbcast:0 {DPP}")
    e("s_cbranch_vccnz L_again")
    e("L_merge:")
    stamp(3)
    for j in range(1, maxcnt): e(f"v_fmac_f32_dpp v{RA if j & 1 else F}, v{W}, v{R0+j} row_newbcast:{j} {DPP}")
    e(f"v_add_f32 v{F}, v{F}, v{RA}\nv_mul_f32 v{F}, v{F}, v{G+3}\nv_cvt_pk_bf16_f32 v{F}, v{F}, v{F}")
    e(f"buffer_store_short v{F}, v10, s[20:23], s73 offen {opt.get('outf', '')}")
    e("s_cmp_lg_u32 s3, 0\ns_cbranch_scc1 L_fin\ns_cmp_eq_u32 s47, 0\ns_cbranch_scc1 L_fin")
    e(f"v_mov_b32 v24, s25\ns_mov_b64 exec, 1\nbuffer_store_dword v24, off, s[28:31], s24 {opt.get('outf', '')}")
    e("s_branch L_fin")
    e("L_again:")
    miss("a", "L_merge")
    row_loads("L_poll")
    e("s_branch L_poll")
    e("L_againml:")
    miss("m", "L_gotml")
    e(ml_load)
    e("s_branch L_pollml")

    e("L_shared:")
    e(f"v_xor_b32 v24, v28, v2\nv_lshlrev_b32 v24, 4, v24\nv_lshl_add_u32 v24, v2, 9, v24\nv_add_u32 v24, {QL}, v24")
    e("v_xor_b32 v25, 0x80, v24\nv_xor_b32 v26, 16, v24\nv_xor_b32 v27, 0x90, v24")
    for i in range(4):
        for c in range(2): e(f"ds_read_b128 {vr(Q0+16*c+4*i)}, v{24+2*c+(i&1)} offset:{256*(i>>1)}")
    e(f"v_mov_b32 v{NG}, {NEG:#x}\ns_mov_b32 s64, 0x05040100\ns_mov_b32 s65, 0x07060302")
    e("s_waitcnt vmcnt(16) lgkmcnt(0)")
    for t in range(2):
        for i in range(4):
            for hb in range(2):
                for c in range(2):
                    d = D0 + 16 * t + 8 * hb + 4 * c
                    e(f"v_mfma_f32_16x16x32_bf16 {vr(d)}, {vr(Kr(t,hb,i))}, {vr(Q0+16*c+4*i)}, {'0' if i == 0 else vr(d)}")
    verify()
    for t in range(2):
        for hb in range(2):
            for u in range(2):
                d = D0 + 16 * t + 8 * hb
                e(f"v_add_f32 v{S+4*t+2*hb+u}, v{d+2*u}, v{d+4+2*u+1}")
    softmax()
    for a in range(4): e(f"v_cvt_pk_bf16_f32 v{PB+a}, v{S+2*a}, v{S+2*a+1}")
    write_ml()
    e(f"v_mul_u32_u24 v16, {ROWS}, v2\nv_lshl_add_u32 v16, v3, 7, v16\ns_mul_i32 s58, s3, {WAVES}\nv_add_u32 v16, s58, v16")
    e(f"v_and_b32 v25, 7, v1\nv_lshlrev_b32 v28, 2, v25\nv_add_u32 v28, {OKF}, v28\nv_lshlrev_b32 v10, 5, v1\ns_lshl4_add_u32 s77, s47, s33")
    e(f"s_lshl_b32 s58, s3, 7\ns_add_u32 s58, s58, {ML}\nv_lshl_add_u32 v29, v2, 3, s58")
    e(f"s_mul_i32 s58, s3, {2*ROWS}\nv_add_u32 v30, s58, v17\nv_add_u32 v31, {4*WAVES}, v30")
    def Ar(hf, j): return K0 + 32 * hf + 4 * j
    def Or(hf, j): return (Q0 if hf == 0 else D0) + 4 * j
    def perms(a, hf):
        t, tp = a >> 1, 2 * (a & 1)
        for j in range(8):
            e(f"v_perm_b32 v{Ar(hf,j)+a}, v{Vr(t,tp+1,hf)+j//2}, v{Vr(t,tp,hf)+j//2}, s{64+(j&1)}")
    e(f"s_cmp_ge_u32 s3, 4\ns_cbranch_scc1 {'L_vload' if QF else 'L_sx'}")
    e("L_sy:")
    for a in range(3):
        e(f"s_waitcnt vmcnt({12-4*a})")
        perms(a, 0); perms(a, 1)
    e("s_waitcnt vmcnt(1)")
    perms(3, 0)
    e("s_waitcnt vmcnt(0)")
    for j in range(8):
        e(f"v_perm_b32 v{Ar(1,j)+3}, v{Vr(1,3,1)+j//2}, v{Vr(1,2,1)+j//2}, s{64+(j&1)}")
        e(f"v_mfma_f32_16x16x32_bf16 {vr(Or(0,j))}, {vr(Ar(0,j))}, {vr(PB)}, 0")
    for j in range(8):
        e(f"v_mfma_f32_16x16x32_bf16 {vr(Or(1,j))}, {vr(Ar(1,j))}, {vr(PB)}, 0")
        e(f"ds_write_b128 v16, {vr(Or(0,j))} offset:{16*j}")
    for j in range(8): e(f"ds_write_b128 v16, {vr(Or(1,j))} offset:{512+16*j}")
    stamp(3)
    e("s_cmp_ge_u32 s3, 4\ns_cbranch_scc1 L_sb")
    warm("s")
    e("L_sx:")
    e("s_waitcnt lgkmcnt(0)\ns_barrier")
    SA = 248
    def lo(r, w): return Q0 + 16 * r + 4 * (w & 3)
    def sreads(w0):
        for w in range(w0, w0 + 4):
            for r in range(2): e(f"ds_read_b128 {vr(lo(r,w))}, v{30+w//4} offset:{(w%4)*WAVES+r*ROWS}")
    def sacc(w, r):
        for i in range(4):
            e(f"{'v_mul_f32_dpp' if w == 0 else 'v_fmac_f32_dpp'} v{SA+4*r+i}, v{S}, v{lo(r,w)+i} row_newbcast:{8*r+w} {DPP}")
    e(f"ds_read_b32 v24, v28\nds_read_b64 v[{M}:{M+1}], v29")
    sreads(0)
    e("s_waitcnt lgkmcnt(8)\nv_cmp_ne_u32 vcc, 0, v24")
    weights8()
    for w in range(4):
        e(f"s_waitcnt lgkmcnt({6-2*w})")
        sacc(w, 0); sacc(w, 1)
        if w < 3: sumstep(w)
    tag_ml()
    e("s_cmp_ge_u32 s3, 4\ns_cbranch_scc1 L_sy")
    e("L_sb:")
    e("s_mov_b64 exec, 0x101")
    put("buffer_store_dwordx3", f"v[{T0}:{T2}]", "v10", "s77", 0)
    flush_far()
    e("s_mov_b64 exec, -1")
    e("s_waitcnt lgkmcnt(0)\ns_barrier")
    stamp(4)
    for r in range(2):
        for w in range(4, 8): e(f"ds_read_b128 {vr(lo(r,w))}, v31 offset:{(w%4)*WAVES+r*ROWS}")
    for r in range(2):
        for w in range(4, 8):
            e(f"s_waitcnt lgkmcnt({11-4*r-w})")
            sacc(w, r)
        for i in range(4): tag(SA + 4 * r + i)
        if r == 1: stamp(2)
        put("buffer_store_dwordx4", vr(SA + 4 * r), "v17", "s61", 1024 * r)
    if opt.get("farbar", 1) and DUAL: e("s_barrier")
    flush_far()
    e("L_fin:")
    if PROF:
        e("s_waitcnt vmcnt(0)")
        stamp(5)
        e("s_mov_b64 exec, 1\ns_getreg_b32 s58, hwreg(HW_REG_XCC_ID)\ns_waitcnt lgkmcnt(0)")
        for n in range(6): e(f"v_mov_b32 v{64+n}, s{80+2*n}")
        e("v_mov_b32 v70, s58\nv_mov_b32 v71, s59")
        e("s_lshl3_add_u32 s58, s2, s3\ns_lshl_b32 s58, s58, 5\ns_add_u32 s58, s58, 0x300000\ns_mov_b32 s30, 0x400000")
        e("buffer_store_dwordx4 v[64:67], off, s[28:31], s58\nbuffer_store_dwordx4 v[68:71], off, s[28:31], s58 offset:16")
    e("L_end:\ns_endpgm")

    e("L_mismatch:")
    e("s_cmp_lg_u32 s46, 1\ns_cbranch_scc1 L_end")
    e("s_waitcnt vmcnt(0) lgkmcnt(0)\ns_barrier")
    e("s_lshl_b32 s58, s45, 2\ns_load_dword s48, s[36:37], s58")
    e("v_lshlrev_b32 v28, 1, v3\nv_add_u32 v29, 1, v28\nv_add_u32 v30, 8, v28\nv_add_u32 v31, 9, v28")
    e(f"v_mov_b32 v{MR}, v{NG}\nv_mov_b32 v{LS}, 0")
    for i in range(8): e(f"v_mov_b32 v{ACC+i}, 0")
    e("s_mov_b32 s47, 0\ns_mov_b32 s72, 0\ns_mov_b32 s41, -1\ns_mov_b32 s74, s3\ns_waitcnt lgkmcnt(0)")
    e("s_min_i32 s48, s48, 0x800\ns_cmp_gt_i32 s48, 0\ns_cselect_b32 s75, s48, 0x800\ns_max_i32 s48, s48, 0")
    e("L_gloop:")
    e("s_lshl_b32 s76, s74, 4\ns_cmp_ge_u32 s76, s75\ns_cbranch_scc1 L_gdone")
    e("s_lshl_b32 s58, s45, 7\ns_add_u32 s58, s58, s74\ns_lshl_b32 s58, s58, 2\ns_load_dword s77, s[16:17], s58")
    e("s_sub_i32 s76, s48, s76")
    for t in range(4): e(f"v_cmp_gt_i32 s[{50+2*t}:{51+2*t}], s76, v{28+t}")
    e("s_waitcnt lgkmcnt(0)\ns_min_u32 s77, s77, 575\ns_lshl_b32 s77, s77, 16\ns_add_u32 s40, s77, s60")
    for hb in range(2):
        for i in range(4):
            e(f"buffer_load_dwordx4 {vr(Kr(1,hb,i))}, v{4+hb}, s[4:7], s40 offen offset:{128*i}")
    for tp in range(4):
        for hf in range(2):
            e(f"buffer_load_dwordx4 {vr(Vr(0,tp,hf))}, v{6+tp}, s[8:11], s40 offen offset:{256*hf}")
    e("s_waitcnt vmcnt(8)")
    qk_private(1, D0)
    e("s_nop 7")
    fold_private(D0, S)
    for t in range(4): e(f"v_cndmask_b32 v{S+t}, v{NG}, v{S+t}, s[{50+2*t}:{51+2*t}]")
    e(f"v_max3_f32 v{M}, v{S}, v{S+1}, v{S+2}\nv_max3_f32 v{M}, v{M}, v{S+3}, v{MR}")
    xg("v_max_f32", M)
    e(f"v_mul_f32 v{T1}, s49, v{M}\nv_mul_f32 v{AL}, s49, v{MR}\nv_sub_f32 v{AL}, v{AL}, v{T1}\nv_exp_f32 v{AL}, v{AL}\nv_mov_b32 v{MR}, v{M}")
    for t in range(4): e(f"v_fma_f32 v{S+t}, v{S+t}, s49, -v{T1}")
    for t in range(4): e(f"v_exp_f32 v{S+t}, v{S+t}")
    e(f"v_mul_f32 v{LS}, v{LS}, v{AL}")
    for t in range(4): e(f"v_add_f32 v{LS}, v{LS}, v{S+t}")
    for i in range(8): e(f"v_mul_f32 v{ACC+i}, v{ACC+i}, v{AL}")
    pz(4)
    e("s_waitcnt vmcnt(0)\ns_nop 0")
    for tp in range(4):
        for hf in range(2):
            e(f"v_mfma_f32_16x16x32_bf16 {vr(ACC+4*hf)}, {vr(Vr(0,tp,hf))}, {vr(PZ+4*tp)}, {vr(ACC+4*hf)}")
    e("s_add_u32 s74, s74, 8\ns_branch L_gloop")
    e("L_gdone:")
    xg("v_add_f32", LS)
    e(f"v_mul_f32 v{M}, s49, v{MR}")
    e("s_branch L_ptail")

    e(".p2align 7\n.type plan_table,@object\nplan_table:")
    for role, pieces in plan:
        for r in wave_rows(role, pieces, entry_bases(plan)): e(".long " + ", ".join(f"{x:#x}" for x in r))
    e(".size plan_table, 4096")
    e(f'.section .rodata,"a"\n.p2align 6\n.amdhsa_kernel {KNAME}')
    e(".amdhsa_next_free_vgpr 256\n.amdhsa_next_free_sgpr 102\n.amdhsa_accum_offset 256")
    e(".amdhsa_group_segment_fixed_size 0\n.amdhsa_kernarg_size 64\n.amdhsa_user_sgpr_count 2")
    e(".amdhsa_user_sgpr_kernarg_segment_ptr 1\n.amdhsa_system_sgpr_workgroup_id_x 1")
    e(".amdhsa_float_denorm_mode_32 3\n.end_amdhsa_kernel")
    text = "\n".join(L) + "\n"
    bad = check(text)
    for b in bad: print("HAZARD need %d have %d: %s -> %s" % b, file=sys.stderr)
    assert not bad
    return text

if __name__ == "__main__":
    import json
    opt = json.loads(sys.argv[2]) if len(sys.argv) > 2 else {}
    open(sys.argv[1], "w").write(gen(opt))
    for w in make_plan(opt): print(w, sum(p[2] for p in w[1]))
```
